```python
import torch

def _softmax(x, axis=-1):
    return torch.softmax(x, dim=axis)
def _gelu(x):
    return torch.nn.functional.gelu(x, approximate="tanh")
def _silu(x):
    return torch.nn.functional.silu(x)
def _sigmoid(x):
    return torch.sigmoid(x)
def _layernorm(x, axis=-1, eps=1e-5):
    m = x.mean(dim=axis, keepdim=True)
    v = x.var(dim=axis, keepdim=True, unbiased=False)
    return (x - m) / torch.sqrt(v + eps)
def _scatter_add(tgt, idx, src, axis=0):
    return tgt.clone().index_add_(axis, idx, src)
def _segment_sum(src, seg, n):
    out = torch.zeros((n,) + src.shape[1:], dtype=src.dtype)
    return out.index_add_(0, seg, src)
def _pad(x, pw):
    flat = tuple(v for pair in reversed(pw) for v in pair)
    return torch.nn.functional.pad(x, flat)

kernel_name = 'interleave_layers__grouped_kv_mqa__sliding_local_dilated__prompt'

def setup_inputs():

    _w = (lambda a: (lambda t: t.to(torch.bfloat16) if t.is_floating_point() else t)(torch.as_tensor(a)))
    def _A_setup():
        B, S, D, H = 1, 2048, 576, 32
        Dh = D // H
        return {
            "x": _w((lambda *s: torch.randn(*s, dtype=torch.bfloat16) * 0.05)(B, S, D)),
            "wq": _w((lambda *s: torch.randn(*s, dtype=torch.bfloat16) * 0.05)(D, H * Dh)),
            "wk": _w((lambda *s: torch.randn(*s, dtype=torch.bfloat16) * 0.05)(D, Dh)),
            "wv": _w((lambda *s: torch.randn(*s, dtype=torch.bfloat16) * 0.05)(D, Dh)),
            "wo": _w((lambda *s: torch.randn(*s, dtype=torch.bfloat16) * 0.05)(H * Dh, D)),
        }
    _A_in = _A_setup()

    def _B_setup():
        B, S, D = 1, 2048, 576
        return {
            "x": _w((lambda *s: torch.randn(*s, dtype=torch.bfloat16) * 0.05)(B, S, D)),
            "wqkv": _w((lambda *s: torch.randn(*s, dtype=torch.bfloat16) * 0.05)(D, 3 * D)),
            "wo": _w((lambda *s: torch.randn(*s, dtype=torch.bfloat16) * 0.05)(D, D)),
        }
    _B_in = _B_setup()

    return {
        "A_x": _A_in["x"],
        "A_wq": _A_in["wq"],
        "A_wk": _A_in["wk"],
        "A_wv": _A_in["wv"],
        "A_wo": _A_in["wo"],
        "B_x": _B_in["x"],
        "B_wqkv": _B_in["wqkv"],
        "B_wo": _B_in["wo"],
    }

def reference(A_x, A_wq, A_wk, A_wv, A_wo, B_x, B_wqkv, B_wo):
    def _A_ref(x, wq, wk, wv, wo):
        B, S, D = x.shape
        H = 32
        Dh = D // H
        q = (lambda x, *d: x.permute(*d))((x @ wq).reshape(B, S, H, Dh), 0, 2, 1, 3)
        k = x @ wk
        v = x @ wv
        scores = torch.einsum("bhqd,bkd->bhqk", q, k) * (Dh ** -0.5)
        p = _softmax(scores, axis=-1)
        o = torch.einsum("bhqk,bkd->bhqd", p, v)
        return (lambda x, *d: x.permute(*d))(o, 0, 2, 1, 3).reshape(B, S, H * Dh) @ wo

    def _B_ref(x, wqkv, wo):
        B, S, D = x.shape
        H = 32; Dh = D // H
        W, dil = 8, 2
        qkv = (lambda x, *d: x.permute(*d))((x @ wqkv).reshape(B, S, 3, H, Dh), 2, 0, 3, 1, 4)
        q, k, v = qkv[0], qkv[1], qkv[2]
        scale = Dh ** -0.5
        pos = torch.arange(S)
        off = torch.arange(W) * dil
        idx = pos[:, None] - off[None, :]
        mask = idx >= 0
        idx_c = torch.where(mask, idx, 0).reshape(-1)
        kg = k[:, :, idx_c, :].reshape(B, H, S, W, Dh)
        vg = v[:, :, idx_c, :].reshape(B, H, S, W, Dh)
        logits = torch.einsum("bhsd,bhswd->bhsw", q, kg) * scale
        logits = torch.where(mask[None, None, :, :], logits, -1e9)
        attn = _softmax(logits, axis=-1)
        o = torch.einsum("bhsw,bhswd->bhsd", attn, vg)
        return (lambda x, *d: x.permute(*d))(o, 0, 2, 1, 3).reshape(B, S, D) @ wo

    x = A_x
    x = x + _A_ref(_layernorm(x, axis=-1), A_wq, A_wk, A_wv, A_wo)
    x = x + _B_ref(_layernorm(x, axis=-1), B_wqkv, B_wo)
    x = x + _A_ref(_layernorm(x, axis=-1), A_wq, A_wk, A_wv, A_wo)
    x = x + _B_ref(_layernorm(x, axis=-1), B_wqkv, B_wo)
    return x
```

```python
import math, sys

OUT = "interleave_layers__grouped_kv_mqa__sliding_local_dilated__prompt.s"

S, D, H, DH = 2048, 576, 32, 18
ROWB = D * 2
ACT_BYTES = S * ROWB

WA1F = 0x000000
WOAF = 0x0C0000
WOBF = 0x180000
WQKVF = 0x240000
QP = 0x500000
KVIMG = 0x780000
OBUF = 0x800000
X1 = 0xB00000
X2 = 0xE00000
X3 = 0x1100000
WS_BYTES = 268435456

TILE_REC = 2496
KOFF2 = 1024
VOFF = 1280
SCALE = DH ** -0.5
LOG2E = 1.4426950408889634

def f32bits(x):
    import struct
    return struct.unpack("<I", struct.pack("<f", x))[0]

class K:
    def __init__(self, name, threads, grid, lds, vgpr, sgpr=102):
        self.name, self.threads, self.grid, self.lds = name, threads, grid, lds
        self.vgpr, self.sgpr = vgpr, sgpr
        self.L = []
    def e(self, s):
        for line in s.strip("\n").split("\n"):
            self.L.append("    " + line.strip())
    def label(self, s):
        self.L.append(f"{self.name}_{s}:")
    def lab(self, s):
        return f"{self.name}_{s}"
    def text(self):
        return f".p2align 8\n{self.name}_kernel:\n" + "\n".join(self.L) + "\n"
    def desc(self):
        acc = (self.vgpr + 3) // 4 * 4
        return f""".amdhsa_kernel {self.name}_kernel
  .amdhsa_next_free_vgpr {self.vgpr}
  .amdhsa_next_free_sgpr {self.sgpr}
  .amdhsa_accum_offset {acc}
  .amdhsa_group_segment_fixed_size 0
  .amdhsa_kernarg_size 88
  .amdhsa_user_sgpr_count 2
  .amdhsa_user_sgpr_kernarg_segment_ptr 1
  .amdhsa_system_sgpr_workgroup_id_x 1
.end_amdhsa_kernel
"""
    def srd(self, d, base, nbytes, off=0):
        if off:
            self.e(f"s_add_u32 s{d}, s{base}, {off}\ns_addc_u32 s{d+1}, s{base+1}, 0")
        else:
            self.e(f"s_mov_b32 s{d}, s{base}\ns_mov_b32 s{d+1}, s{base+1}")
        self.e(f"s_mov_b32 s{d+2}, {nbytes}\ns_mov_b32 s{d+3}, 0x00020000")

ARG = dict(A_x=0, A_wq=8, A_wk=16, A_wv=24, A_wo=32, B_x=40, B_wqkv=48, B_wo=56, out=64, dbg=72, ws=80)

def ptr_of(k, sreg, src):
    kind, v = src
    if kind == 'arg':
        k.e(f"s_load_dwordx2 s[{sreg}:{sreg+1}], s[0:1], {ARG[v]}")
        return 0
    else:
        k.e(f"s_load_dwordx2 s[{sreg}:{sreg+1}], s[0:1], {ARG['ws']}")
        return v

def gen_prep():
    NBLK = 4176
    k = K("prep", 256, 1044, 0, 32)
    k.e(f"s_cmp_ge_u32 s2, 1044\ns_cbranch_scc1 {k.lab('end')}")
    k.e("""
    s_load_dwordx4 s[4:7], s[0:1], 8
    s_load_dwordx4 s[8:11], s[0:1], 24
    s_load_dwordx4 s[12:15], s[0:1], 48
    s_load_dwordx2 s[16:17], s[0:1], 80
    v_lshrrev_b32 v1, 6, v0
    v_and_b32 v2, 63, v0
    v_and_b32 v3, 15, v2
    v_readfirstlane_b32 s20, v1
    v_lshrrev_b32 v4, 4, v2
    s_lshl_b32 s21, s2, 2
    s_nop 2
    s_add_u32 s21, s21, s20
    s_waitcnt lgkmcnt(0)
    """)
    def div18(dst, src, tmp):
        k.e(f"s_mul_i32 s{dst}, s{src}, 3641\ns_lshr_b32 s{dst}, s{dst}, 16")
    for b in range(4176):
        assert (b * 3641) >> 16 == b // 18
    for b in range(120):
        assert (b * 4370) >> 16 == b // 15
    k.e(f"s_cmp_lt_u32 s21, 648\ns_cbranch_scc1 {k.lab('wq')}")
    k.e(f"s_cmp_lt_u32 s21, 720\ns_cbranch_scc1 {k.lab('wkv')}")
    k.e(f"s_cmp_lt_u32 s21, 1368\ns_cbranch_scc1 {k.lab('woa')}")
    k.e(f"s_cmp_lt_u32 s21, 2016\ns_cbranch_scc1 {k.lab('wob')}")
    k.e("s_sub_u32 s22, s21, 2016")
    div18(31, 22, 0)
    k.e("s_mul_i32 s23, s31, 18\ns_sub_u32 s29, s22, s23")
    k.e("s_mul_i32 s32, s31, 4370\ns_lshr_b32 s32, s32, 16")
    k.e("s_mul_i32 s23, s32, 15\ns_sub_u32 s33, s31, s23")
    k.e(f"s_lshl_b32 s30, s22, 10\ns_add_u32 s30, s30, {WQKVF}")
    k.srd(24, 12, 576 * 1728 * 2)
    k.e("s_mov_b32 s28, 3456")
    k.e("""
    s_lshl_b32 s23, s33, 4
    v_add_u32 v6, s23, v3
    v_mul_u32_u24 v7, 0x334, v6
    v_lshrrev_b32 v7, 16, v7
    v_mul_u32_u24 v8, 80, v7
    v_sub_u32 v8, v6, v8
    v_mul_u32_u24 v9, 0xccd, v8
    v_lshrrev_b32 v9, 16, v9
    v_mul_u32_u24 v10, 20, v9
    v_sub_u32 v10, v8, v10
    s_mul_i32 s23, s32, 72
    v_mul_u32_u24 v11, 18, v9
    v_add_u32 v11, v11, v10
    v_add_u32 v11, s23, v11
    v_mul_u32_u24 v12, 576, v7
    v_add_u32 v11, v11, v12
    v_lshlrev_b32 v5, 1, v11
    v_mov_b32 v13, 0x7fff0000
    v_cmp_gt_u32 vcc, 18, v10
    s_nop 1
    v_cndmask_b32 v5, v13, v5, vcc
    """)
    for c in range(240):
        assert (c * 0x334) >> 16 == c // 80
    for r in range(80):
        assert (r * 0xccd) >> 16 == r // 20
    k.e(f"s_branch {k.lab('go')}")
    def square(lbl, base_blk, sptr, dst):
        k.label(lbl)
        k.e(f"s_sub_u32 s22, s21, {base_blk}")
        div18(31, 22, 0)
        k.e("s_mul_i32 s23, s31, 18\ns_sub_u32 s29, s22, s23")
        k.e(f"s_lshl_b32 s30, s22, 10\ns_add_u32 s30, s30, {dst}")
        k.srd(24, sptr, 576 * 576 * 2)
        k.e("s_mov_b32 s28, 1152")
        k.e("s_lshl_b32 s23, s31, 4\nv_add_u32 v5, s23, v3\nv_lshlrev_b32 v5, 1, v5")
        k.e(f"s_branch {k.lab('go')}")
    square("wq", 0, 4, WA1F)
    square("woa", 720, 10, WOAF)
    square("wob", 1368, 14, WOBF)
    k.label("wkv")
    k.e("s_sub_u32 s22, s21, 648")
    div18(31, 22, 0)
    k.e("s_mul_i32 s23, s31, 18\ns_sub_u32 s29, s22, s23")
    k.e(f"s_lshl_b32 s30, s21, 10\ns_add_u32 s30, s30, {WA1F}")
    k.e(f"""
    s_cmp_lt_u32 s31, 2
    s_cselect_b32 s24, s6, s8
    s_cselect_b32 s25, s7, s9
    s_mov_b32 s26, {576*18*2}
    s_mov_b32 s27, 0x00020000
    s_mov_b32 s28, 36
    s_and_b32 s23, s31, 1
    s_lshl_b32 s23, s23, 4
    v_add_u32 v6, s23, v3
    v_lshlrev_b32 v5, 1, v6
    v_mov_b32 v13, 0x7fff0000
    v_cmp_gt_u32 vcc, 18, v6
    s_nop 1
    v_cndmask_b32 v5, v13, v5, vcc
    """)
    k.label("go")
    k.e("""
    s_lshl_b32 s23, s29, 5
    v_lshlrev_b32 v6, 3, v4
    v_add_u32 v6, s23, v6
    v_mul_lo_u32 v6, v6, s28
    v_add_u32 v5, v5, v6
    v_mov_b32 v16, 0
    v_mov_b32 v17, 0
    v_mov_b32 v18, 0
    v_mov_b32 v19, 0
    s_mov_b32 s40, 0
    """)
    for j in range(1, 8):
        k.e(f"s_add_u32 s{40+j}, s{39+j}, s28")
    k.srd(36, 16, WS_BYTES)
    for j in range(8):
        k.e(f"buffer_load_ushort v{20 + j}, v5, s[24:27], s{40+j} offen")
    k.e("""
    v_lshlrev_b32 v7, 4, v2
    v_add_u32 v7, s30, v7
    s_waitcnt vmcnt(0)
    v_lshl_or_b32 v16, v21, 16, v20
    v_lshl_or_b32 v17, v23, 16, v22
    v_lshl_or_b32 v18, v25, 16, v24
    v_lshl_or_b32 v19, v27, 16, v26
    buffer_store_dwordx4 v[16:19], v7, s[36:39], 0 offen
    """)
    k.label("end")
    k.e("s_endpgm")
    return k

PA = 1168

def emit_ln(k, st, t):
    k.e(f"v_mov_b32 v{t}, 0\nv_mov_b32 v{t+1}, 0\nv_mov_b32 v{t+2}, 0x3f803f80")
    for i in range(72):
        k.e(f"v_dot2_f32_bf16 v{t}, v{st+i}, v{t+2}, v{t}")
        k.e(f"v_dot2_f32_bf16 v{t+1}, v{st+i}, v{st+i}, v{t+1}")
    k.e(f"""
    s_nop 3
    v_add_f32_dpp v{t}, v{t}, v{t} quad_perm:[1,0,3,2] row_mask:0xf bank_mask:0xf
    v_add_f32_dpp v{t+1}, v{t+1}, v{t+1} quad_perm:[1,0,3,2] row_mask:0xf bank_mask:0xf
    s_nop 1
    v_add_f32_dpp v{t}, v{t}, v{t} quad_perm:[2,3,0,1] row_mask:0xf bank_mask:0xf
    v_add_f32_dpp v{t+1}, v{t+1}, v{t+1} quad_perm:[2,3,0,1] row_mask:0xf bank_mask:0xf
    v_mul_f32 v{t}, {f32bits(1.0/576):#x}, v{t}
    v_mul_f32 v{t+1}, {f32bits(1.0/576):#x}, v{t+1}
    v_fma_f32 v{t+1}, -v{t}, v{t}, v{t+1}
    v_max_f32 v{t+1}, 0, v{t+1}
    v_cvt_pk_bf16_f32 v{t+3}, v{t}, v{t+1}
    v_lshlrev_b32 v{t}, 16, v{t+3}
    v_and_b32 v{t+1}, 0xffff0000, v{t+3}
    v_add_f32 v{t+1}, {f32bits(1e-5):#x}, v{t+1}
    v_cvt_pk_bf16_f32 v{t+3}, v{t+1}, v{t+1}
    v_lshlrev_b32 v{t+1}, 16, v{t+3}
    v_sqrt_f32 v{t+1}, v{t+1}
    s_nop 0
    v_cvt_pk_bf16_f32 v{t+3}, v{t+1}, v{t+1}
    v_lshlrev_b32 v{t+1}, 16, v{t+3}
    v_rcp_f32 v{t+1}, v{t+1}
    s_nop 0
    v_mul_f32 v{t}, v{t}, v{t+1}
    v_sub_f32 v{t}, 0, v{t}
    """)
    for i in range(72):
        k.e(f"""
        v_lshlrev_b32 v{t+4}, 16, v{st+i}
        v_and_b32 v{t+5}, 0xffff0000, v{st+i}
        v_fma_f32 v{t+4}, v{t+4}, v{t+1}, v{t}
        v_fma_f32 v{t+5}, v{t+5}, v{t+1}, v{t}
        v_cvt_pk_bf16_f32 v{st+i}, v{t+4}, v{t+5}
        """)

def emit_bloads(k, BF, nct, srd, so_base, vlane16):
    for ks in range(18):
        for c in range(nct):
            so = so_base + c
            r = BF + 72 * c + 4 * ks
            if ks >= 4 and ks % 4 == 0:
                k.e(f"s_add_u32 s{so}, s{so}, 4096")
            k.e(f"buffer_load_dwordx4 v[{r}:{r+3}], v{vlane16}, s[{srd}:{srd+3}], s{so} offen offset:{(ks%4)*1024}")

def gen_gemm64(name, a_src, do_ln, w_off, nb_count, epi, res_src=None, dst=None):
    grid = 32 * nb_count
    k = K(name, 256, grid, 64 * PA, 248)
    ST, BF, T = 16, 96, 240
    ACC, AF = 16, 32
    k.e(f"s_cmp_ge_u32 s2, {grid}\ns_cbranch_scc1 {k.lab('end')}")
    aoff = ptr_of(k, 4, a_src)
    k.e(f"s_load_dwordx2 s[6:7], s[0:1], {ARG['ws']}")
    if epi == 'res':
        roff = ptr_of(k, 8, res_src)
        doff = ptr_of(k, 10, dst)
    k.e("""
    s_and_b32 s12, s2, 31
    s_lshr_b32 s13, s2, 5
    v_lshrrev_b32 v1, 6, v0
    v_and_b32 v2, 63, v0
    s_nop 0
    v_readfirstlane_b32 s14, v1
    v_lshrrev_b32 v3, 2, v2
    v_and_b32 v4, 3, v2
    s_waitcnt lgkmcnt(0)
    """)
    k.srd(16, 4, ACT_BYTES, aoff)
    k.srd(20, 6, WS_BYTES, 0)
    k.e(f"""
    s_lshl_b32 s15, s12, 6
    s_lshl_b32 s24, s14, 4
    s_add_u32 s15, s15, s24
    v_add_u32 v5, s15, v3
    v_mul_u32_u24 v5, {ROWB}, v5
    v_lshl_add_u32 v5, v4, 4, v5
    """)
    for i in range(18):
        k.e(f"buffer_load_dwordx4 v[{ST+4*i}:{ST+4*i+3}], v5, s[16:19], 0 offen offset:{64*i}")
    k.e(f"""
    s_and_b32 s24, s14, 1
    s_lshl_b32 s24, s24, 1
    s_lshl_b32 s25, s13, 2
    s_add_u32 s24, s24, s25
    s_mul_i32 s24, s24, {18*1024}
    s_add_u32 s24, s24, {w_off}
    s_add_u32 s25, s24, {18*1024}
    v_lshlrev_b32 v6, 4, v2
    """)
    emit_bloads(k, BF, 2, 20, 24, 6)
    k.e(f"""
    v_and_b32 v7, 15, v2
    v_lshrrev_b32 v8, 4, v2
    s_lshr_b32 s26, s14, 1
    s_lshl_b32 s26, s26, 5
    s_lshl_b32 s27, s12, 6
    s_add_u32 s36, s26, s27
    v_add_u32 v9, s36, v7
    s_and_b32 s27, s14, 1
    s_lshl_b32 s27, s27, 5
    s_lshl_b32 s28, s13, 6
    s_add_u32 s27, s27, s28
    v_lshl_add_u32 v10, v8, 2, s27
    v_mul_u32_u24 v11, {ROWB}, v9
    v_lshl_add_u32 v11, v10, 1, v11
    v_add_u32 v12, {16*ROWB}, v11
    """)
    nres = 0
    if epi == 'res':
        k.srd(28, 8, ACT_BYTES, roff)
        k.srd(32, 10, ACT_BYTES, doff)
        for rt in range(2):
            for ct in range(2):
                r = 88 + 4 * rt + 2 * ct
                k.e(f"buffer_load_dwordx2 v[{r}:{r+1}], v{11+rt}, s[28:31], 0 offen offset:{ct*32}")
        nres = 4
    k.e(f"""
    s_lshl_b32 s24, s14, 4
    v_add_u32 v13, s24, v3
    v_mul_u32_u24 v13, {PA}, v13
    v_lshl_add_u32 v13, v4, 4, v13
    v_add_u32 v14, s26, v7
    v_mul_u32_u24 v14, {PA}, v14
    v_lshl_add_u32 v14, v8, 4, v14
    s_waitcnt vmcnt({36 + nres})
    """)
    if do_ln:
        emit_ln(k, ST, T)
    for i in range(18):
        k.e(f"ds_write_b128 v13, v[{ST+4*i}:{ST+4*i+3}] offset:{64*i}")
    k.e("s_waitcnt lgkmcnt(0)\ns_barrier")
    for r in range(16):
        k.e(f"v_mov_b32 v{ACC+r}, 0")
    def aread(ks):
        b = ks & 1
        for rt in range(2):
            r = AF + 8 * b + 4 * rt
            k.e(f"ds_read_b128 v[{r}:{r+3}], v14 offset:{rt*16*PA + ks*64}")
    aread(0)
    for ks in range(18):
        if ks + 1 < 18:
            aread(ks + 1)
            k.e(f"s_waitcnt vmcnt({36 - 2*(ks+1) + nres}) lgkmcnt(2)")
        else:
            k.e(f"s_waitcnt vmcnt({nres}) lgkmcnt(0)")
        b = ks & 1
        for rt in range(2):
            for ct in range(2):
                a = ACC + 8 * rt + 4 * ct
                w = BF + 72 * ct + 4 * ks
                x = AF + 8 * b + 4 * rt
                k.e(f"v_mfma_f32_16x16x32_bf16 v[{a}:{a+3}], v[{w}:{w+3}], v[{x}:{x+3}], v[{a}:{a+3}]")
    k.e("s_nop 7\ns_nop 1")
    if epi == 'res':
        k.e("s_waitcnt vmcnt(0)")
        for rt in range(2):
            for ct in range(2):
                a = ACC + 8 * rt + 4 * ct
                r = 88 + 4 * rt + 2 * ct
                k.e(f"""
                v_cvt_pk_bf16_f32 v{T}, v{a}, v{a+1}
                v_cvt_pk_bf16_f32 v{T+1}, v{a+2}, v{a+3}
                v_lshlrev_b32 v{T+2}, 16, v{T}
                v_and_b32 v{T+3}, 0xffff0000, v{T}
                v_lshlrev_b32 v{T+4}, 16, v{T+1}
                v_and_b32 v{T+5}, 0xffff0000, v{T+1}
                v_lshlrev_b32 v{T+6}, 16, v{r}
                v_and_b32 v{T+7}, 0xffff0000, v{r}
                v_add_f32 v{T+2}, v{T+2}, v{T+6}
                v_add_f32 v{T+3}, v{T+3}, v{T+7}
                v_lshlrev_b32 v{T+6}, 16, v{r+1}
                v_and_b32 v{T+7}, 0xffff0000, v{r+1}
                v_add_f32 v{T+4}, v{T+4}, v{T+6}
                v_add_f32 v{T+5}, v{T+5}, v{T+7}
                v_cvt_pk_bf16_f32 v{r}, v{T+2}, v{T+3}
                v_cvt_pk_bf16_f32 v{r+1}, v{T+4}, v{T+5}
                buffer_store_dwordx2 v[{r}:{r+1}], v{11+rt}, s[32:35], 0 offen offset:{ct*32}
                """)
    else:
        k.e(f"s_cmp_eq_u32 s13, 9\ns_cbranch_scc1 {k.lab('kv')}")
        c = f32bits(SCALE * LOG2E)
        k.e(f"s_mov_b32 s37, {c:#x}")
        for rt in range(2):
            for ct in range(2):
                a = ACC + 8 * rt + 4 * ct
                r = 88 + 4 * rt + 2 * ct
                k.e(f"""
                v_mul_f32 v{a}, s37, v{a}
                v_mul_f32 v{a+1}, s37, v{a+1}
                v_mul_f32 v{a+2}, s37, v{a+2}
                v_mul_f32 v{a+3}, s37, v{a+3}
                v_cvt_pk_bf16_f32 v{r}, v{a}, v{a+1}
                v_cvt_pk_bf16_f32 v{r+1}, v{a+2}, v{a+3}
                v_add_u32 v{T}, {QP}, v{11+rt}
                buffer_store_dwordx2 v[{r}:{r+1}], v{T}, s[20:23], 0 offen offset:{ct*32}
                """)
        k.e(f"s_branch {k.lab('end')}")
        k.label("kv")
        k.e(f"s_and_b32 s27, s14, 1\ns_cmp_eq_u32 s27, 1\ns_cbranch_scc1 {k.lab('vpart')}")
        for rt in range(2):
            a0 = ACC + 8 * rt
            a1 = a0 + 4
            k.e(f"""
            v_add_u32 v{T}, {16*rt}, v9
            v_lshrrev_b32 v{T+1}, 5, v{T}
            v_and_b32 v{T+2}, 31, v{T}
            v_mul_u32_u24 v{T+1}, {TILE_REC}, v{T+1}
            v_add_u32 v{T+1}, {KVIMG}, v{T+1}
            v_lshl_add_u32 v{T+3}, v{T+2}, 4, v{T+1}
            v_lshrrev_b32 v{T+4}, 1, v8
            v_lshl_add_u32 v{T+3}, v{T+4}, 9, v{T+3}
            v_and_b32 v{T+4}, 1, v8
            v_lshl_add_u32 v{T+3}, v{T+4}, 3, v{T+3}
            v_cvt_pk_bf16_f32 v88, v{a0}, v{a0+1}
            v_cvt_pk_bf16_f32 v89, v{a0+2}, v{a0+3}
            buffer_store_dwordx2 v[88:89], v{T+3}, s[20:23], 0 offen
            v_lshl_add_u32 v{T+5}, v{T+2}, 3, v{T+1}
            v_cvt_pk_bf16_f32 v90, v{a1}, v{a1+1}
            v_mov_b32 v91, 0x3f80
            v_cmp_eq_u32 vcc, 0, v8
            s_and_saveexec_b64 s[38:39], vcc
            buffer_store_dwordx2 v[90:91], v{T+5}, s[20:23], 0 offen offset:{KOFF2}
            s_mov_b64 exec, s[38:39]
            s_nop 1
            """)
        k.e(f"s_branch {k.lab('end')}")
        k.label("vpart")
        for rt in range(2):
            a0 = ACC + 8 * rt
            a1 = a0 + 4
            k.e(f"""
            v_add_u32 v{T}, {16*rt}, v9
            v_lshrrev_b32 v{T+1}, 5, v{T}
            v_mul_u32_u24 v{T+1}, {TILE_REC}, v{T+1}
            v_add_u32 v{T+1}, {KVIMG + VOFF}, v{T+1}
            v_bfe_u32 v{T+2}, v{T}, 4, 1
            v_mul_u32_u24 v{T+2}, 608, v{T+2}
            v_add_u32 v{T+1}, v{T+1}, v{T+2}
            v_bfe_u32 v{T+2}, v{T}, 2, 1
            v_mul_u32_u24 v{T+2}, 304, v{T+2}
            v_add_u32 v{T+1}, v{T+1}, v{T+2}
            v_and_b32 v{T+2}, 3, v{T}
            v_lshl_add_u32 v{T+1}, v{T+2}, 1, v{T+1}
            v_bfe_u32 v{T+2}, v{T}, 3, 1
            v_lshl_add_u32 v{T+1}, v{T+2}, 3, v{T+1}
            v_lshl_add_u32 v{T+3}, v8, 6, v{T+1}
            """)
            for r in range(4):
                k.e(f"""
                v_cvt_pk_bf16_f32 v{88+r}, v{a0+r}, v{a0+r}
                buffer_store_short v{88+r}, v{T+3}, s[20:23], 0 offen offset:{r*16}
                """)
            k.e(f"""
            v_cvt_pk_bf16_f32 v92, v{a1}, v{a1}
            v_cvt_pk_bf16_f32 v93, v{a1+1}, v{a1+1}
            v_mov_b32 v94, 0x3f80
            v_cmp_eq_u32 vcc, 0, v8
            s_and_saveexec_b64 s[38:39], vcc
            buffer_store_short v92, v{T+1}, s[20:23], 0 offen offset:{16*16}
            buffer_store_short v93, v{T+1}, s[20:23], 0 offen offset:{17*16}
            buffer_store_short v94, v{T+1}, s[20:23], 0 offen offset:{18*16}
            s_mov_b64 exec, s[38:39]
            s_nop 1
            """)
    k.label("end")
    k.e("s_endpgm")
    return k

def gen_attn(name):
    k = K(name, 512, 256, 163840, 128)
    Q1, Q2 = 8, 12
    KA = 16
    VA = 32
    SB = 48
    PB = 80
    OA = 96
    M = 112
    k.e(f"s_cmp_ge_u32 s2, 256\ns_cbranch_scc1 {k.lab('end')}")
    k.e(f"""
    s_load_dwordx2 s[4:5], s[0:1], {ARG['ws']}
    v_lshrrev_b32 v1, 6, v0
    v_and_b32 v2, 63, v0
    s_nop 0
    v_readfirstlane_b32 s14, v1
    v_and_b32 v3, 31, v2
    v_lshrrev_b32 v4, 5, v2
    s_waitcnt lgkmcnt(0)
    """)
    k.srd(16, 4, WS_BYTES, 0)
    k.e(f"""
    s_lshl_b32 s15, s2, 3
    s_add_u32 s15, s15, s14
    s_mul_i32 s20, s15, {ROWB}
    s_add_u32 s21, s20, {QP}
    v_mul_u32_u24 v5, 36, v3
    v_lshl_add_u32 v6, v4, 4, v5
    buffer_load_dwordx4 v[{Q1}:{Q1+3}], v6, s[16:19], s21 offen
    buffer_load_dword v{Q2}, v5, s[16:19], s21 offen offset:32
    v_lshlrev_b32 v7, 4, v2
    """)
    k.e(f"s_lshl_b32 s22, s14, 10\ns_add_u32 s23, s22, {KVIMG}")
    for i in range(20):
        if i == 19:
            k.e(f"s_cmp_ge_u32 s14, 4\ns_cbranch_scc1 {k.lab('dmadone')}")
        k.e(f"""
        s_mov_b32 m0, s22
        s_nop 0
        buffer_load_dwordx4 v7, s[16:19], s23 offen lds
        s_add_u32 s22, s22, 8192
        s_add_u32 s23, s23, 8192
        """)
    k.label("dmadone")
    k.e(f"""
    v_lshlrev_b32 v113, 4, v3
    v_lshl_add_u32 v113, v4, 9, v113
    v_lshlrev_b32 v114, 3, v3
    v_add_u32 v114, {KOFF2}, v114
    v_min_u32 v115, 18, v3
    v_lshlrev_b32 v115, 4, v115
    v_mul_u32_u24 v116, 304, v4
    v_add_u32 v115, v115, v116
    v_add_u32 v115, {VOFF}, v115
    v_mov_b32 v{Q2+1}, 0
    v_mov_b32 v{Q2+2}, 0
    v_mov_b32 v{Q2+3}, 0
    v_mov_b32 v{KA+6}, 0
    v_mov_b32 v{KA+7}, 0
    v_mov_b32 v{KA+14}, 0
    v_mov_b32 v{KA+15}, 0
    v_mov_b32 v{M}, 0xff7fffff
    v_cmp_eq_u32 s[30:31], 0, v4
    s_nop 1
    s_waitcnt vmcnt(19)
    """)
    k.e(f"v_cndmask_b32 v{Q2}, 0, v{Q2}, s[30:31]")
    AK1, AK2, AV = 113, 114, 115
    def kread(b, off):
        k.e(f"ds_read_b128 v[{KA+8*b}:{KA+8*b+3}], v{AK1} offset:{off}")
        k.e(f"ds_read_b64 v[{KA+8*b+4}:{KA+8*b+5}], v{AK2} offset:{off}")
    def qk(b, s):
        k.e(f"v_mfma_f32_32x32x16_bf16 v[{s}:{s+15}], v[{KA+8*b}:{KA+8*b+3}], v[{Q1}:{Q1+3}], 0")
        k.e(f"v_mfma_f32_32x32x16_bf16 v[{s}:{s+15}], v[{KA+8*b+4}:{KA+8*b+7}], v[{Q2}:{Q2+3}], v[{s}:{s+15}]")
    for stage in range(4):
        k.e(f"s_waitcnt vmcnt({max(19 - 5*(stage+1), 0) if stage < 3 else 0})\ns_barrier")
        k.e(f"s_mov_b32 s24, 2")
        k.label(f"p1_{stage}")
        kread(0, 0)
        for t in range(8):
            b = t & 1
            if t + 1 < 8:
                kread(1 - b, (t + 1) * TILE_REC)
                k.e("s_waitcnt lgkmcnt(2)")
            else:
                k.e("s_waitcnt lgkmcnt(0)")
            s = SB + 16 * b
            qk(b, s)
            if t == 1:
                k.e("s_nop 7")
            if t > 0:
                sp = SB + 16 * (1 - b)
                for r in range(0, 16, 2):
                    k.e(f"v_max3_f32 v{M}, v{M}, v{sp+r}, v{sp+r+1}")
        k.e("s_nop 7\ns_nop 3")
        sp = SB + 16 * 1
        for r in range(0, 16, 2):
            k.e(f"v_max3_f32 v{M}, v{M}, v{sp+r}, v{sp+r+1}")
        k.e(f"""
        v_add_u32 v{AK1}, {8*TILE_REC}, v{AK1}
        v_add_u32 v{AK2}, {8*TILE_REC}, v{AK2}
        s_sub_u32 s24, s24, 1
        s_cmp_lg_u32 s24, 0
        s_cbranch_scc1 {k.lab(f'p1_{stage}')}
        """)
    k.e(f"""
    v_mov_b32 v117, v{M}
    s_nop 1
    v_permlane32_swap_b32 v{M}, v117
    v_max_f32 v{M}, v{M}, v117
    v_sub_f32 v{M}, 0, v{M}
    v_cvt_pk_bf16_f32 v117, v{M}, 0
    v_and_b32 v117, 0xffff, v117
    v_cndmask_b32 v{Q2+1}, 0, v117, s[30:31]
    v_subrev_u32 v{AK1}, {64*TILE_REC}, v{AK1}
    v_subrev_u32 v{AK2}, {64*TILE_REC}, v{AK2}
    """)
    for r in range(16):
        k.e(f"v_mov_b32 v{OA+r}, 0")
    def vread(b, off):
        k.e(f"ds_read_b128 v[{VA+8*b}:{VA+8*b+3}], v{AV} offset:{off}")
        k.e(f"ds_read_b128 v[{VA+8*b+4}:{VA+8*b+7}], v{AV} offset:{off+608}")
    kread(0, 0)
    k.e("s_waitcnt lgkmcnt(0)")
    qk(0, SB)
    kread(1, TILE_REC)
    k.e("s_mov_b32 s24, 8\ns_nop 7")
    k.label("main")
    U = 8
    for t in range(U):
        b = t & 1
        s = SB + 16 * b
        sn = SB + 16 * (1 - b)
        p = PB + 8 * b
        vread(b, t * TILE_REC)
        k.e("s_waitcnt lgkmcnt(2)")
        qk(1 - b, sn)
        kread(b, (t + 2) * TILE_REC)
        for r in range(16):
            k.e(f"v_exp_f32 v{s+r}, v{s+r}")
        k.e("s_nop 0")
        for r in range(8):
            k.e(f"v_cvt_pk_bf16_f32 v{p+r}, v{s+2*r}, v{s+2*r+1}")
        k.e("s_waitcnt lgkmcnt(2)")
        k.e(f"v_mfma_f32_32x32x16_bf16 v[{OA}:{OA+15}], v[{VA+8*b}:{VA+8*b+3}], v[{p}:{p+3}], v[{OA}:{OA+15}]")
        k.e(f"v_mfma_f32_32x32x16_bf16 v[{OA}:{OA+15}], v[{VA+8*b+4}:{VA+8*b+7}], v[{p+4}:{p+7}], v[{OA}:{OA+15}]")
    k.e(f"""
    v_add_u32 v{AK1}, {U*TILE_REC}, v{AK1}
    v_add_u32 v{AK2}, {U*TILE_REC}, v{AK2}
    v_add_u32 v{AV}, {U*TILE_REC}, v{AV}
    s_sub_u32 s24, s24, 1
    s_cmp_lg_u32 s24, 0
    s_cbranch_scc1 {k.lab('main')}
    s_waitcnt lgkmcnt(0)
    s_nop 7
    s_nop 7
    v_rcp_f32 v117, v{OA+10}
    s_add_u32 s21, s20, {OBUF}
    v_lshl_add_u32 v6, v4, 3, v5
    """)
    for r in range(10):
        k.e(f"v_mul_f32 v{OA+r}, v{OA+r}, v117")
    for r in range(5):
        k.e(f"v_cvt_pk_bf16_f32 v{PB+r}, v{OA+2*r}, v{OA+2*r+1}")
    k.e(f"""
    buffer_store_dwordx2 v[{PB}:{PB+1}], v6, s[16:19], s21 offen
    buffer_store_dwordx2 v[{PB+2}:{PB+3}], v6, s[16:19], s21 offen offset:16
    s_and_saveexec_b64 s[32:33], s[30:31]
    buffer_store_dword v{PB+4}, v5, s[16:19], s21 offen offset:32
    """)
    k.label("end")
    k.e("s_endpgm")
    return k

def gen_qkvb(name, a_src):
    k = K(name, 512, 256, 80 * PA, 248)
    ST, BF, T = 16, 96, 240
    ACC, AF = 16, 56
    PQ = 480
    k.e(f"s_cmp_ge_u32 s2, 256\ns_cbranch_scc1 {k.lab('end')}")
    aoff = ptr_of(k, 4, a_src)
    k.e(f"s_load_dwordx2 s[6:7], s[0:1], {ARG['ws']}")
    k.e("""
    s_and_b32 s12, s2, 31
    s_lshr_b32 s13, s2, 5
    v_lshrrev_b32 v1, 6, v0
    v_and_b32 v2, 63, v0
    s_nop 0
    v_readfirstlane_b32 s14, v1
    v_lshrrev_b32 v3, 2, v2
    v_and_b32 v4, 3, v2
    v_and_b32 v7, 15, v2
    v_lshrrev_b32 v8, 4, v2
    v_lshlrev_b32 v6, 4, v2
    s_waitcnt lgkmcnt(0)
    """)
    k.srd(16, 4, ACT_BYTES, aoff)
    k.srd(20, 6, WS_BYTES, 0)
    k.e(f"s_cmp_ge_u32 s14, 5\ns_cbranch_scc1 {k.lab('noa')}")
    k.e(f"""
    s_lshl_b32 s15, s12, 6
    s_lshl_b32 s24, s14, 4
    s_add_u32 s15, s15, s24
    s_sub_u32 s15, s15, 16
    v_add_u32 v5, s15, v3
    v_max_i32 v5, 0, v5
    v_mul_u32_u24 v5, {ROWB}, v5
    v_lshl_add_u32 v5, v4, 4, v5
    """)
    for i in range(18):
        k.e(f"buffer_load_dwordx4 v[{ST+4*i}:{ST+4*i+3}], v5, s[16:19], 0 offen offset:{64*i}")
    k.label("noa")
    k.e(f"""
    s_mul_i32 s24, s13, 15
    s_lshl_b32 s25, s14, 1
    s_add_u32 s24, s24, s25
    s_mul_i32 s24, s24, {18*1024}
    s_add_u32 s24, s24, {WQKVF}
    s_add_u32 s25, s24, {18*1024}
    """)
    emit_bloads(k, BF, 2, 20, 24, 6)
    k.e(f"""
    s_lshl_b32 s24, s14, 4
    v_add_u32 v13, s24, v3
    v_mul_u32_u24 v13, {PA}, v13
    v_lshl_add_u32 v13, v4, 4, v13
    v_mul_u32_u24 v14, {PA}, v7
    v_lshl_add_u32 v14, v8, 4, v14
    v_add_u32 v15, {48*PA}, v14
    s_cmp_ge_u32 s14, 5
    s_cbranch_scc1 {k.lab('nola')}
    s_waitcnt vmcnt(36)
    """)
    emit_ln(k, ST, T)
    for i in range(18):
        k.e(f"ds_write_b128 v13, v[{ST+4*i}:{ST+4*i+3}] offset:{64*i}")
    k.e("s_waitcnt lgkmcnt(0)")
    k.label("nola")
    k.e("s_barrier")
    for r in range(40):
        k.e(f"v_mov_b32 v{ACC+r}, 0")
    def aread(ks):
        b = ks & 1
        for rt in range(5):
            r = AF + 20 * b + 4 * rt
            if rt < 3:
                k.e(f"ds_read_b128 v[{r}:{r+3}], v14 offset:{rt*16*PA + ks*64}")
            else:
                k.e(f"ds_read_b128 v[{r}:{r+3}], v15 offset:{(rt-3)*16*PA + ks*64}")
    aread(0)
    for ks in range(18):
        if ks + 1 < 18:
            aread(ks + 1)
            k.e(f"s_waitcnt vmcnt({36 - 2*(ks+1)}) lgkmcnt(5)")
        else:
            k.e(f"s_waitcnt vmcnt(0) lgkmcnt(0)")
        b = ks & 1
        for rt in range(5):
            for ct in range(2):
                a = ACC + 8 * rt + 4 * ct
                w = BF + 72 * ct + 4 * ks
                x = AF + 20 * b + 4 * rt
                k.e(f"v_mfma_f32_16x16x32_bf16 v[{a}:{a+3}], v[{w}:{w+3}], v[{x}:{x+3}], v[{a}:{a+3}]")
    k.e("s_nop 7\ns_nop 1\ns_barrier")
    k.e(f"""
    v_mul_u32_u24 v9, {PQ}, v7
    v_lshl_add_u32 v9, v8, 3, v9
    s_lshl_b32 s24, s14, 6
    v_add_u32 v9, s24, v9
    """)
    for rt in range(5):
        for ct in range(2):
            a = ACC + 8 * rt + 4 * ct
            if ct == 1:
                k.e(f"s_cmp_eq_u32 s14, 7\ns_cbranch_scc1 {k.lab(f'skipw{rt}')}")
            k.e(f"""
            v_cvt_pk_bf16_f32 v{T}, v{a}, v{a+1}
            v_cvt_pk_bf16_f32 v{T+1}, v{a+2}, v{a+3}
            ds_write_b64 v9, v[{T}:{T+1}] offset:{rt*16*PQ + ct*32}
            """)
            if ct == 1:
                k.label(f"skipw{rt}")
    k.e(f"""
    s_waitcnt lgkmcnt(0)
    s_barrier
    s_cmp_ge_u32 s14, 4
    s_cbranch_scc1 {k.lab('end')}
    """)
    QR, LG, KR, VR = 16, 32, 96, 176
    k.vgpr = 256
    k.e(f"""
    s_lshl_b32 s24, s14, 4
    v_add_u32 v9, s24, v3
    v_add_u32 v10, 2, v9
    v_mul_u32_u24 v10, {PQ}, v10
    v_mul_u32_u24 v11, 40, v4
    v_add_u32 v10, v10, v11
    s_lshl_b32 s24, s12, 6
    v_add_u32 v9, s24, v9
    """)
    for i in range(5):
        k.e(f"ds_read_b64 v[{QR+2*i}:{QR+2*i+1}], v10 offset:{14*PQ + 8*i}")
    for w in range(8):
        for i in range(5):
            k.e(f"ds_read_b64 v[{KR+10*w+2*i}:{KR+10*w+2*i+1}], v10 offset:{(14-2*w)*PQ + 160 + 8*i}")
        if w % 2 == 1:
            k.e("s_waitcnt lgkmcnt(0)")
    for w in range(8):
        for i in range(5):
            k.e(f"ds_read_b64 v[{VR+10*w+2*i}:{VR+10*w+2*i+1}], v10 offset:{(14-2*w)*PQ + 320 + 8*i}")
        if w % 2 == 1 and w < 7:
            k.e("s_waitcnt lgkmcnt(5)")
    for w in range(8):
        k.e(f"v_mov_b32 v{LG+w}, 0")
    for i in range(9):
        for w in range(8):
            k.e(f"v_dot2_f32_bf16 v{LG+w}, v{QR+i}, v{KR+10*w+i}, v{LG+w}")
    c = f32bits(SCALE * LOG2E)
    k.e(f"s_mov_b32 s37, {c:#x}\nv_mov_b32 v12, 0xf149f2ca\ns_nop 1")
    for w in range(8):
        k.e(f"v_mul_f32 v{LG+w}, s37, v{LG+w}")
        if w > 0:
            k.e(f"v_cmp_le_u32 vcc, {2*w}, v9\ns_nop 1\nv_cndmask_b32 v{LG+w}, v12, v{LG+w}, vcc")
    k.e(f"""
    v_max3_f32 v13, v{LG}, v{LG+1}, v{LG+2}
    v_max3_f32 v13, v13, v{LG+3}, v{LG+4}
    v_max3_f32 v13, v13, v{LG+5}, v{LG+6}
    v_max_f32 v13, v13, v{LG+7}
    """)
    for w in range(8):
        k.e(f"v_sub_f32 v{LG+w}, v{LG+w}, v13")
    for w in range(8):
        k.e(f"v_exp_f32 v{LG+w}, v{LG+w}")
    k.e(f"""
    s_nop 0
    v_add_f32 v14, v{LG}, v{LG+1}
    v_add_f32 v15, v{LG+2}, v{LG+3}
    v_add_f32 v14, v14, v{LG+4}
    v_add_f32 v15, v15, v{LG+5}
    v_add_f32 v14, v14, v{LG+6}
    v_add_f32 v15, v15, v{LG+7}
    v_add_f32 v14, v14, v15
    v_rcp_f32 v14, v14
    s_waitcnt lgkmcnt(0)
    """)
    for w in range(8):
        k.e(f"v_mul_f32 v{LG+w}, v{LG+w}, v14")
    OA = 40
    for i in range(9):
        for w in range(8):
            k.e(f"v_lshlrev_b32 v58, 16, v{VR+10*w+i}\nv_and_b32 v59, 0xffff0000, v{VR+10*w+i}")
            if w == 0:
                k.e(f"v_mul_f32 v{OA+2*i}, v{LG}, v58\nv_mul_f32 v{OA+2*i+1}, v{LG}, v59")
            else:
                k.e(f"v_fmac_f32 v{OA+2*i}, v{LG+w}, v58\nv_fmac_f32 v{OA+2*i+1}, v{LG+w}, v59")
    for i in range(9):
        k.e(f"v_cvt_pk_bf16_f32 v{60+i}, v{OA+2*i}, v{OA+2*i+1}")
    k.e(f"""
    v_mul_u32_u24 v9, {ROWB}, v9
    v_mul_u32_u24 v11, 36, v4
    v_add_u32 v9, v9, v11
    s_mul_i32 s24, s13, 144
    s_add_u32 s24, s24, {OBUF}
    buffer_store_dwordx4 v[60:63], v9, s[20:23], s24 offen
    buffer_store_dwordx4 v[64:67], v9, s[20:23], s24 offen offset:16
    buffer_store_dword v68, v9, s[20:23], s24 offen offset:32
    """)
    k.label("end")
    k.e("s_endpgm")
    return k

def main():
    ks = []
    launches = []
    def add(kk):
        ks.append(kk); launches.append(kk)
    add(gen_prep())
    att = gen_attn("attn")
    xs = [('arg', 'A_x'), ('ws', X1), ('ws', X2), ('ws', X3), ('arg', 'out')]
    for L in range(2):
        add(gen_gemm64(f"qkva{L}", xs[2*L], True, WA1F, 10, 'qkv'))
        if L == 0:
            ks.append(att)
        launches.append(att)
        add(gen_gemm64(f"oa{L}", ('ws', OBUF), False, WOAF, 9, 'res', xs[2*L], xs[2*L+1]))
        add(gen_qkvb(f"qkvb{L}", xs[2*L+1]))
        add(gen_gemm64(f"ob{L}", ('ws', OBUF), False, WOBF, 9, 'res', xs[2*L+1], xs[2*L+2]))
    hdr = open(OUT + ".ref").read().split("; Override launch")[0]
    out = hdr
    for l in launches:
        out += f"; @launch kernel={l.name}_kernel grid=({l.grid},1,1) block=({l.threads},1,1) lds={l.lds}\n"
    out += '.amdgcn_target "amdgcn-amd-amdhsa--gfx950"\n.text\n'
    for kk in ks:
        out += f".globl {kk.name}_kernel\n.type {kk.name}_kernel,@function\n" + kk.text()
    out += '.section .rodata,"a"\n'
    for kk in ks:
        out += ".p2align 6\n" + kk.desc()
    open(OUT, "w").write(out)
    print("wrote", OUT, len(out), "bytes")

if __name__ == "__main__":
    main()
```

```python
import math, sys, struct

OUT = "interleave_layers__grouped_kv_mqa__sliding_local_dilated__prompt.s"
PROFILE = len(sys.argv) > 1 and sys.argv[1] == "prof"
if PROFILE:
    OUT = "prof.s"

S, D, H, DH = 2048, 576, 32, 18
ROWB = D * 2
ACT_BYTES = S * ROWB

WA1F = 0x000000
WOAF = 0x0C0000
WOBF = 0x180000
WQKVF = 0x240000
CSA = 0x470000
CSB = 0x471000
CSSTR = 0x4000
KMAX = 0x484000
STATS = 0x490000
QP = 0x500000
KVIMG = 0x780000
OBUF = 0x800000
X1 = 0xB00000
X2 = 0xE00000
X3 = 0x1100000
PROF = 0x2000000
WS_BYTES = 268435456

TILE_REC = 2496
KOFF2 = 1024
VOFF = 1280
SCALE = DH ** -0.5
LOG2E = 1.4426950408889634
BOUND_LIMIT = 60.0

def f32bits(x):
    return struct.unpack("<I", struct.pack("<f", x))[0]

ARG = dict(A_x=0, A_wq=8, A_wk=16, A_wv=24, A_wo=32, B_x=40, B_wqkv=48, B_wo=56, out=64, dbg=72, ws=80)
KID = dict(qkva0=0, attn=1, oa0=2, qkvb0=3, ob0=4, qkva1=5, oa1=6, qkvb1=7, ob1=8, prep=9)

class K:
    def __init__(self, name, threads, grid, lds, vgpr, sgpr=102):
        self.name, self.threads, self.grid, self.lds = name, threads, grid, lds
        self.vgpr, self.sgpr = vgpr, sgpr
        self.L = []
        self.nst = 0
    def e(self, s):
        for line in s.strip("\n").split("\n"):
            if line.strip():
                self.L.append("    " + line.strip())
    def label(self, s):
        self.L.append(f"{self.name}_{s}:")
    def lab(self, s):
        return f"{self.name}_{s}"
    def text(self):
        return f".p2align 8\n{self.name}_kernel:\n" + "\n".join(self.L) + "\n"
    def desc(self):
        acc = (self.vgpr + 3) // 4 * 4
        return f""".amdhsa_kernel {self.name}_kernel
  .amdhsa_next_free_vgpr {self.vgpr}
  .amdhsa_next_free_sgpr {self.sgpr}
  .amdhsa_accum_offset {acc}
  .amdhsa_group_segment_fixed_size 0
  .amdhsa_kernarg_size 88
  .amdhsa_user_sgpr_count 2
  .amdhsa_user_sgpr_kernarg_segment_ptr 1
  .amdhsa_system_sgpr_workgroup_id_x 1
.end_amdhsa_kernel
"""
    def stamp(self):
        if not PROFILE: return
        i = self.nst; self.nst += 1
        self.e(f"s_memtime s[{70+2*i}:{71+2*i}]")
        if i == 0:
            self.e("s_memrealtime s[96:97]")
    def stamp_flush(self, wavesreg):
        if not PROFILE: return
        kid = KID[self.name]
        self.e(f"s_memrealtime s[{70+2*self.nst}:{71+2*self.nst}]")
        self.e(f"s_cmp_lg_u32 s{wavesreg}, 0\ns_cbranch_scc1 {self.lab('nostamp')}")
        self.e(f"s_load_dwordx2 s[60:61], s[0:1], {ARG['ws']}\ns_waitcnt lgkmcnt(0) vmcnt(0)")
        self.e(f"s_add_u32 s60, s60, {PROF + kid*65536}\ns_addc_u32 s61, s61, 0\ns_mov_b32 s62, 65536\ns_mov_b32 s63, 0x00020000")
        self.e(f"s_mov_b64 exec, 1\ns_lshl_b32 s65, s2, 6\nv_mov_b32 v1, s65")
        for i in range(self.nst + 1):
            self.e(f"v_mov_b32 v2, s{70+2*i}\nbuffer_store_dword v2, v1, s[60:63], 0 offen offset:{4*i}")
        self.e(f"v_mov_b32 v2, s96\nbuffer_store_dword v2, v1, s[60:63], 0 offen offset:60")
        self.label("nostamp")
    def srd(self, d, base, nbytes, off=0):
        if off:
            self.e(f"s_add_u32 s{d}, s{base}, {off}\ns_addc_u32 s{d+1}, s{base+1}, 0")
        else:
            self.e(f"s_mov_b32 s{d}, s{base}\ns_mov_b32 s{d+1}, s{base+1}")
        self.e(f"s_mov_b32 s{d+2}, {nbytes}\ns_mov_b32 s{d+3}, 0x00020000")

def ptr_of(k, sreg, src):
    kind, v = src
    if kind == 'arg':
        k.e(f"s_load_dwordx2 s[{sreg}:{sreg+1}], s[0:1], {ARG[v]}")
        return 0
    k.e(f"s_load_dwordx2 s[{sreg}:{sreg+1}], s[0:1], {ARG['ws']}")
    return v

def row4_sum(k, a, t):
    k.e(f"""
    v_mov_b32 v{t}, v{a}
    s_nop 1
    v_permlane16_swap_b32 v{a}, v{t}
    v_add_f32 v{a}, v{a}, v{t}
    v_mov_b32 v{t}, v{a}
    s_nop 1
    v_permlane32_swap_b32 v{a}, v{t}
    v_add_f32 v{a}, v{a}, v{t}
    """)

def row4_max(k, a, t):
    k.e(f"""
    v_mov_b32 v{t}, v{a}
    s_nop 1
    v_permlane16_swap_b32 v{a}, v{t}
    v_max_f32 v{a}, v{a}, v{t}
    v_mov_b32 v{t}, v{a}
    s_nop 1
    v_permlane32_swap_b32 v{a}, v{t}
    v_max_f32 v{a}, v{a}, v{t}
    """)

def row16_max(k, a):
    k.e(f"""
    s_nop 1
    v_max_f32_dpp v{a}, v{a}, v{a} quad_perm:[1,0,3,2] row_mask:0xf bank_mask:0xf
    s_nop 1
    v_max_f32_dpp v{a}, v{a}, v{a} quad_perm:[2,3,0,1] row_mask:0xf bank_mask:0xf
    s_nop 1
    v_max_f32_dpp v{a}, v{a}, v{a} row_half_mirror row_mask:0xf bank_mask:0xf
    s_nop 1
    v_max_f32_dpp v{a}, v{a}, v{a} row_mirror row_mask:0xf bank_mask:0xf
    """)

def gen_prep():
    NW = 824
    k = K("prep", 256, NW // 4, 0, 96)
    k.e(f"s_cmp_ge_u32 s2, {NW//4}\ns_cbranch_scc1 {k.lab('end')}")
    k.e("""
    s_load_dwordx4 s[4:7], s[0:1], 8
    s_load_dwordx4 s[8:11], s[0:1], 24
    s_load_dwordx4 s[12:15], s[0:1], 48
    s_load_dwordx2 s[16:17], s[0:1], 80
    s_load_dwordx2 s[18:19], s[0:1], 0
    v_lshrrev_b32 v1, 6, v0
    v_and_b32 v2, 63, v0
    v_and_b32 v3, 15, v2
    v_readfirstlane_b32 s20, v1
    v_lshrrev_b32 v4, 4, v2
    s_lshl_b32 s21, s2, 2
    s_nop 2
    s_add_u32 s21, s21, s20
    s_waitcnt lgkmcnt(0)
    """)
    k.stamp()
    k.srd(36, 16, WS_BYTES)
    for b in range(696):
        assert (b * 21846) >> 16 == b // 3
    k.e(f"""
    s_sub_u32 s35, s21, 696
    s_cmp_ge_u32 s21, 696
    s_cbranch_scc1 {k.lab('stats')}
    s_mul_i32 s34, s21, 21846
    s_lshr_b32 s34, s34, 16
    s_mul_i32 s35, s34, 3
    s_sub_u32 s35, s21, s35
    s_mov_b32 s21, s34
    """)
    k.e(f"s_cmp_ge_u32 s21, 232\ns_cbranch_scc1 {k.lab('stats')}")
    k.e(f"s_cmp_lt_u32 s21, 36\ns_cbranch_scc1 {k.lab('wq')}")
    k.e(f"s_cmp_lt_u32 s21, 40\ns_cbranch_scc1 {k.lab('wkv')}")
    k.e(f"s_cmp_lt_u32 s21, 76\ns_cbranch_scc1 {k.lab('woa')}")
    k.e(f"s_cmp_lt_u32 s21, 112\ns_cbranch_scc1 {k.lab('wob')}")
    for b in range(120):
        assert (b * 4370) >> 16 == b // 15
    k.e(f"""
    s_sub_u32 s22, s21, 112
    s_mul_i32 s32, s22, 4370
    s_lshr_b32 s32, s32, 16
    s_mul_i32 s23, s32, 15
    s_sub_u32 s33, s22, s23
    s_mul_i32 s30, s22, {18*1024}
    s_add_u32 s30, s30, {WQKVF}
    s_lshl_b32 s31, s22, 6
    s_add_u32 s31, s31, {CSB}
    """)
    k.srd(24, 12, 576 * 1728 * 2)
    k.e("""
    s_mov_b32 s28, 3456
    s_lshl_b32 s23, s33, 4
    v_add_u32 v6, s23, v3
    v_mul_u32_u24 v7, 0x334, v6
    v_lshrrev_b32 v7, 16, v7
    v_mul_u32_u24 v8, 80, v7
    v_sub_u32 v8, v6, v8
    v_mul_u32_u24 v9, 0xccd, v8
    v_lshrrev_b32 v9, 16, v9
    v_mul_u32_u24 v10, 20, v9
    v_sub_u32 v10, v8, v10
    s_mul_i32 s23, s32, 72
    v_mul_u32_u24 v11, 18, v9
    v_add_u32 v11, v11, v10
    v_add_u32 v11, s23, v11
    v_mul_u32_u24 v12, 576, v7
    v_add_u32 v11, v11, v12
    v_lshlrev_b32 v5, 1, v11
    v_mov_b32 v13, 0x7fff0000
    v_cmp_gt_u32 vcc, 18, v10
    s_nop 1
    v_cndmask_b32 v5, v13, v5, vcc
    """)
    for c in range(240):
        assert (c * 0x334) >> 16 == c // 80
    for r in range(80):
        assert (r * 0xccd) >> 16 == r // 20
    k.e(f"s_branch {k.lab('go')}")
    def square(lbl, base, sptr, dst, cs):
        k.label(lbl)
        k.e(f"s_sub_u32 s22, s21, {base}\ns_mul_i32 s30, s22, {18*1024}\ns_add_u32 s30, s30, {dst}")
        if cs is None:
            k.e("s_mov_b32 s31, -1")
        else:
            k.e(f"s_lshl_b32 s31, s22, 6\ns_add_u32 s31, s31, {cs}")
        k.srd(24, sptr, 576 * 576 * 2)
        k.e("s_mov_b32 s28, 1152\ns_lshl_b32 s23, s22, 4\nv_add_u32 v5, s23, v3\nv_lshlrev_b32 v5, 1, v5")
        k.e(f"s_branch {k.lab('go')}")
    square("wq", 0, 4, WA1F, CSA)
    square("woa", 40, 10, WOAF, None)
    square("wob", 76, 14, WOBF, None)
    k.label("wkv")
    k.e(f"""
    s_sub_u32 s22, s21, 36
    s_mul_i32 s30, s21, {18*1024}
    s_add_u32 s30, s30, {WA1F}
    s_lshl_b32 s31, s21, 6
    s_add_u32 s31, s31, {CSA}
    s_cmp_lt_u32 s22, 2
    s_cselect_b32 s24, s6, s8
    s_cselect_b32 s25, s7, s9
    s_mov_b32 s26, {576*18*2}
    s_mov_b32 s27, 0x00020000
    s_mov_b32 s28, 36
    s_and_b32 s23, s22, 1
    s_lshl_b32 s23, s23, 4
    v_add_u32 v6, s23, v3
    v_lshlrev_b32 v5, 1, v6
    v_mov_b32 v13, 0x7fff0000
    v_cmp_gt_u32 vcc, 18, v6
    s_nop 1
    v_cndmask_b32 v5, v13, v5, vcc
    """)
    k.label("go")
    k.e(f"""
    v_lshlrev_b32 v6, 3, v4
    s_mul_i32 s23, s35, 192
    v_add_u32 v6, s23, v6
    v_mul_lo_u32 v6, v6, s28
    v_add_u32 v5, v5, v6
    s_mov_b32 s40, 0
    s_lshl_b32 s29, s28, 5
    v_lshlrev_b32 v7, 4, v2
    s_mul_i32 s23, s35, 6144
    s_add_u32 s30, s30, s23
    v_add_u32 v7, s30, v7
    v_mov_b32 v8, 0
    v_mov_b32 v9, 0x3f803f80
    """)
    for j in range(1, 8):
        k.e(f"s_add_u32 s{40+j}, s{39+j}, s28")
    for ks in range(6):
        for j in range(8):
            k.e(f"buffer_load_ushort v{16 + 8*ks + j}, v5, s[24:27], s{40+j} offen")
        k.e("v_add_u32 v5, s29, v5")
    for ks in range(6):
        k.e(f"s_waitcnt vmcnt({8*(5-ks)})")
        for jj in range(4):
            k.e(f"v_lshl_or_b32 v{64+4*ks+jj}, v{16+8*ks+2*jj+1}, 16, v{16+8*ks+2*jj}")
        for jj in range(4):
            k.e(f"v_dot2_f32_bf16 v8, v{64+4*ks+jj}, v9, v8")
        if ks == 4:
            k.e("v_add_u32 v7, 4096, v7")
        k.e(f"buffer_store_dwordx4 v[{64+4*ks}:{64+4*ks+3}], v7, s[36:39], 0 offen offset:{(ks%4)*1024}")
    k.e(f"s_cmp_eq_u32 s31, -1\ns_cbranch_scc1 {k.lab('fin')}\ns_nop 2")
    row4_sum(k, 8, 10)
    k.e(f"""
    v_lshlrev_b32 v11, 2, v3
    s_mul_i32 s23, s35, {CSSTR}
    s_add_u32 s31, s31, s23
    v_add_u32 v11, s31, v11
    s_mov_b64 exec, 0xffff
    buffer_store_dword v8, v11, s[36:39], 0 offen
    s_mov_b64 exec, -1
    s_branch {k.lab('fin')}
    """)
    k.label("stats")
    k.srd(24, 18, ACT_BYTES)
    k.e(f"""
    s_lshl_b32 s22, s35, 4
    v_lshrrev_b32 v5, 2, v2
    v_add_u32 v5, s22, v5
    v_and_b32 v6, 3, v2
    v_mul_u32_u24 v7, {ROWB}, v5
    v_lshl_add_u32 v7, v6, 4, v7
    """)
    for i in range(18):
        k.e(f"buffer_load_dwordx4 v[{16+4*i}:{16+4*i+3}], v7, s[24:27], 0 offen offset:{64*i}")
    k.e("v_mov_b32 v8, 0\nv_mov_b32 v9, 0\nv_mov_b32 v10, 0x3f803f80\ns_waitcnt vmcnt(0)")
    for i in range(72):
        k.e(f"v_dot2_f32_bf16 v8, v{16+i}, v10, v8\nv_dot2_f32_bf16 v9, v{16+i}, v{16+i}, v9")
    k.e(f"""
    s_nop 3
    v_add_f32_dpp v8, v8, v8 quad_perm:[1,0,3,2] row_mask:0xf bank_mask:0xf
    v_add_f32_dpp v9, v9, v9 quad_perm:[1,0,3,2] row_mask:0xf bank_mask:0xf
    s_nop 1
    v_add_f32_dpp v8, v8, v8 quad_perm:[2,3,0,1] row_mask:0xf bank_mask:0xf
    v_add_f32_dpp v9, v9, v9 quad_perm:[2,3,0,1] row_mask:0xf bank_mask:0xf
    v_cmp_eq_u32 vcc, 0, v6
    v_lshlrev_b32 v11, 5, v5
    v_lshl_add_u32 v11, v6, 3, v11
    v_add_u32 v11, {STATS}, v11
    v_cndmask_b32 v8, 0, v8, vcc
    v_cndmask_b32 v9, 0, v9, vcc
    buffer_store_dwordx2 v[8:9], v11, s[36:39], 0 offen
    """)
    k.label("fin")
    k.stamp()
    k.stamp_flush(20)
    k.label("end")
    k.e("s_endpgm")
    return k

def emit_rowstat(k, p, t):
    k.e(f"""
    v_add_f32 v{p}, v{p}, v{p+2}
    v_add_f32 v{p+1}, v{p+1}, v{p+3}
    v_add_f32 v{p+4}, v{p+4}, v{p+6}
    v_add_f32 v{p+5}, v{p+5}, v{p+7}
    v_add_f32 v{p}, v{p}, v{p+4}
    v_add_f32 v{p+1}, v{p+1}, v{p+5}
    v_mul_f32 v{p}, {f32bits(1.0/576):#x}, v{p}
    v_mul_f32 v{p+1}, {f32bits(1.0/576):#x}, v{p+1}
    v_fma_f32 v{p+1}, -v{p}, v{p}, v{p+1}
    v_max_f32 v{p+1}, 0, v{p+1}
    v_cvt_pk_bf16_f32 v{t}, v{p}, v{p+1}
    v_and_b32 v{p+2}, 0xffff0000, v{t}
    v_lshlrev_b32 v{p+1}, 16, v{t}
    v_add_f32 v{p+2}, {f32bits(1e-5):#x}, v{p+2}
    v_cvt_pk_bf16_f32 v{t}, v{p+2}, v{p+2}
    v_lshlrev_b32 v{p+2}, 16, v{t}
    v_sqrt_f32 v{p+2}, v{p+2}
    s_nop 0
    v_cvt_pk_bf16_f32 v{t}, v{p+2}, v{p+2}
    v_lshlrev_b32 v{p+2}, 16, v{t}
    v_rcp_f32 v{p}, v{p+2}
    s_nop 0
    """)

def emit_dma_a(k, nfrag, nwaves, srd, vbase, srow):
    niter = (nfrag + nwaves - 1) // nwaves
    k.e("s_mov_b32 s40, s14")
    for i in range(niter):
        if (i + 1) * nwaves > nfrag:
            k.e(f"s_cmp_ge_u32 s40, {nfrag}\ns_cbranch_scc1 {k.lab('dmadone')}")
        k.e(f"""
        s_mul_i32 s41, s40, 57
        s_lshr_b32 s41, s41, 10
        s_mul_i32 s42, s41, 18
        s_sub_u32 s42, s40, s42
        s_lshl_b32 s42, s42, 6
        s_mul_i32 s41, s41, {16*ROWB}
        s_add_u32 s42, s42, s41
        s_add_u32 s42, s42, s{srow}
        s_lshl_b32 s43, s40, 10
        s_mov_b32 m0, s43
        s_add_u32 s40, s40, {nwaves}
        buffer_load_dwordx4 v{vbase}, s[{srd}:{srd+3}], s42 offen lds
        """)
    k.label("dmadone")
for f in range(90):
    assert (f * 57) >> 10 == f // 18


def emit_stats_to_lds(k, st_in, nrows_first, row_sgpr, lds_off, P, T):
    pass

LST = 36 * 1024
def gen_gemm(name, a_src, w_off, nct, epi, st_in=None, res_src=None, dst=None, st_out=None):
    k = K(name, 64 * nct, 256, 36 * 1024 + 4096, 160)
    AF, ACC, BF, P, CS, RS, T = 16, 48, 56, 128, 144, 148, 152
    ln = epi != 'res'
    k.e(f"s_cmp_ge_u32 s2, 256\ns_cbranch_scc1 {k.lab('end')}")
    aoff = ptr_of(k, 4, a_src)
    k.e(f"s_load_dwordx2 s[6:7], s[0:1], {ARG['ws']}")
    if epi == 'res':
        roff = ptr_of(k, 8, res_src)
        doff = ptr_of(k, 10, dst)
    k.e(f"""
    s_and_b32 s12, s2, 63
    s_lshr_b32 s13, s2, 6
    v_lshrrev_b32 v1, 6, v0
    v_and_b32 v2, 63, v0
    v_and_b32 v3, 15, v2
    v_readfirstlane_b32 s14, v1
    v_lshrrev_b32 v4, 4, v2
    v_mul_u32_u24 v5, {ROWB}, v3
    v_lshl_add_u32 v5, v4, 4, v5
    v_lshlrev_b32 v6, 4, v2
    s_mul_i32 s15, s12, {32*ROWB}
    s_lshl_b32 s26, s12, 5
    s_waitcnt lgkmcnt(0)
    """)
    k.stamp()
    k.srd(16, 4, ACT_BYTES, aoff)
    k.srd(20, 6, WS_BYTES, 0)
    if ln:
        k.e(f"""
        s_cmp_lg_u32 s14, 0
        s_cbranch_scc1 {k.lab('nost')}
        v_and_b32 v11, 31, v2
        v_add_u32 v11, s26, v11
        v_lshlrev_b32 v11, 5, v11
        v_add_u32 v11, {STATS + st_in*65536}, v11
        buffer_load_dwordx4 v[{P}:{P+3}], v11, s[20:23], 0 offen
        buffer_load_dwordx4 v[{P+4}:{P+7}], v11, s[20:23], 0 offen offset:16
        """)
        k.label("nost")
    emit_dma_a(k, 36, nct, 16, 5, 15)
    k.e("s_barrier")
    k.e(f"""
    s_mul_i32 s24, s13, {nct}
    s_add_u32 s24, s24, s14
    s_mul_i32 s25, s24, {18*1024}
    s_add_u32 s25, s25, {w_off}
    """)
    PF = 6
    def bload(ks):
        if ks >= 4 and ks % 4 == 0:
            k.e("s_add_u32 s25, s25, 4096")
        k.e(f"buffer_load_dwordx4 v[{BF+4*ks}:{BF+4*ks+3}], v6, s[20:23], s25 offen offset:{(ks%4)*1024}")
    for ks in range(PF):
        bload(ks)
    k.e(f"""
    v_add_u32 v7, s26, v3
    s_lshl_b32 s27, s24, 4
    v_lshl_add_u32 v10, v4, 2, s27
    v_mul_u32_u24 v8, {ROWB}, v7
    v_lshl_add_u32 v8, v10, 1, v8
    v_add_u32 v9, {16*ROWB}, v8
    """)
    if epi == 'res':
        k.srd(28, 8, ACT_BYTES, roff)
        k.srd(32, 10, ACT_BYTES, doff)
        k.e(f"buffer_load_dwordx2 v[{RS}:{RS+1}], v8, s[28:31], 0 offen\nbuffer_load_dwordx2 v[{RS+2}:{RS+3}], v9, s[28:31], 0 offen")
        nextra = 2
    else:
        k.e(f"v_lshlrev_b32 v12, 2, v10\nv_add_u32 v12, {CSA}, v12\nbuffer_load_dwordx4 v[{CS}:{CS+3}], v12, s[20:23], 0 offen")
        k.e(f"s_mov_b32 s27, {CSSTR}\ns_mov_b32 s28, {2*CSSTR}")
        k.e(f"buffer_load_dwordx4 v[{RS}:{RS+3}], v12, s[20:23], s27 offen\nbuffer_load_dwordx4 v[{P+8}:{P+11}], v12, s[20:23], s28 offen")
        nextra = 3
    k.e(f"s_waitcnt vmcnt({PF + nextra})")
    if ln:
        k.e(f"s_cmp_lg_u32 s14, 0\ns_cbranch_scc1 {k.lab('nost2')}")
        emit_rowstat(k, P, T)
        k.e(f"""
        v_lshlrev_b32 v11, 3, v2
        s_mov_b32 exec_lo, -1\n        s_mov_b32 exec_hi, 0
        ds_write_b64 v11, v[{P}:{P+1}] offset:{LST}
        s_mov_b64 exec, -1
        s_waitcnt lgkmcnt(0)
        """)
        k.label("nost2")
    k.e("s_barrier")
    k.stamp()
    for r in range(8):
        k.e(f"v_mov_b32 v{ACC+r}, 0")
    def aread(ks):
        b = ks & 3
        for rt in range(2):
            r = AF + 8 * b + 4 * rt
            k.e(f"ds_read_b128 v[{r}:{r+3}], v6 offset:{(rt*18+ks)*1024}")
    if ln:
        k.e(f"v_lshlrev_b32 v11, 3, v3\nds_read_b64 v[{P}:{P+1}], v11 offset:{LST}\nds_read_b64 v[{P+2}:{P+3}], v11 offset:{LST+128}")
    for ks in range(3):
        aread(ks)
    for ks in range(18):
        if ks + 3 < 18:
            aread(ks + 3)
        if ks + PF < 18:
            bload(ks + PF)
        lg = 2 * min(3, 17 - ks)
        k.e(f"s_waitcnt vmcnt({min(ks + PF, 17) - ks + (nextra if ks < PF else 0)}) lgkmcnt({lg})")
        b = ks & 3
        for rt in range(2):
            a = ACC + 4 * rt
            x = AF + 8 * b + 4 * rt
            k.e(f"v_mfma_f32_16x16x32_bf16 v[{a}:{a+3}], v[{BF+4*ks}:{BF+4*ks+3}], v[{x}:{x+3}], v[{a}:{a+3}]")
    k.e("s_waitcnt vmcnt(0)\ns_nop 7")
    k.stamp()
    if epi == 'res':
        k.e(f"v_mov_b32 v{T+7}, 0x3f803f80")
        for rt in range(2):
            a = ACC + 4 * rt
            r = RS + 2 * rt
            k.e(f"""
            v_cvt_pk_bf16_f32 v{T}, v{a}, v{a+1}
            v_cvt_pk_bf16_f32 v{T+1}, v{a+2}, v{a+3}
            v_lshlrev_b32 v{T+2}, 16, v{T}
            v_and_b32 v{T+3}, 0xffff0000, v{T}
            v_lshlrev_b32 v{T+4}, 16, v{T+1}
            v_and_b32 v{T+5}, 0xffff0000, v{T+1}
            v_lshlrev_b32 v{T+6}, 16, v{r}
            v_and_b32 v{T}, 0xffff0000, v{r}
            v_add_f32 v{T+2}, v{T+2}, v{T+6}
            v_add_f32 v{T+3}, v{T+3}, v{T}
            v_lshlrev_b32 v{T+6}, 16, v{r+1}
            v_and_b32 v{T}, 0xffff0000, v{r+1}
            v_add_f32 v{T+4}, v{T+4}, v{T+6}
            v_add_f32 v{T+5}, v{T+5}, v{T}
            v_cvt_pk_bf16_f32 v{r}, v{T+2}, v{T+3}
            v_cvt_pk_bf16_f32 v{r+1}, v{T+4}, v{T+5}
            buffer_store_dwordx2 v[{r}:{r+1}], v{8+rt}, s[32:35], 0 offen
            """)
            if st_out is not None:
                k.e(f"""
                v_dot2_f32_bf16 v{P+2*rt}, v{r}, v{T+7}, 0
                v_dot2_f32_bf16 v{P+2*rt+1}, v{r}, v{r}, 0
                v_dot2_f32_bf16 v{P+2*rt}, v{r+1}, v{T+7}, v{P+2*rt}
                v_dot2_f32_bf16 v{P+2*rt+1}, v{r+1}, v{r+1}, v{P+2*rt+1}
                """)
        if st_out is not None:
            k.e("s_nop 2")
            for i in range(4):
                row4_sum(k, P + i, T)
            k.e(f"""
            s_lshl_b32 s27, s14, 8
            v_lshl_add_u32 v11, v3, 3, s27
            s_mov_b64 exec, 0xffff
            ds_write_b64 v11, v[{P}:{P+1}] offset:{LST}
            ds_write_b64 v11, v[{P+2}:{P+3}] offset:{LST+128}
            s_mov_b64 exec, -1
            s_waitcnt lgkmcnt(0)
            s_barrier
            s_cmp_lg_u32 s14, 0
            s_cbranch_scc1 {k.lab('fin')}
            v_lshlrev_b32 v11, 3, v2
            """)
            for w in range(nct):
                k.e(f"ds_read_b64 v[{BF+2*w}:{BF+2*w+1}], v11 offset:{LST + 256*w}")
            k.e("s_waitcnt lgkmcnt(0)")
            for w in range(1, nct):
                k.e(f"v_add_f32 v{BF}, v{BF}, v{BF+2*w}\nv_add_f32 v{BF+1}, v{BF+1}, v{BF+2*w+1}")
            k.e(f"""
            v_add_u32 v11, s26, v2
            v_lshlrev_b32 v11, 5, v11
            s_lshl_b32 s27, s13, 3
            s_add_u32 s27, s27, {STATS + st_out*65536}
            s_mov_b32 exec_lo, -1\n        s_mov_b32 exec_hi, 0
            buffer_store_dwordx2 v[{BF}:{BF+1}], v11, s[20:23], s27 offen
            s_mov_b64 exec, -1
            """)
    else:
        for r in range(4):
            k.e(f"v_add_f32 v{CS+r}, v{CS+r}, v{RS+r}\nv_add_f32 v{CS+r}, v{CS+r}, v{P+8+r}")
        for rt in range(2):
            a = ACC + 4 * rt
            for r in range(4):
                k.e(f"v_fma_f32 v{a+r}, -v{P+2*rt+1}, v{CS+r}, v{a+r}")
        k.e(f"s_cmp_ge_u32 s24, 36\ns_cbranch_scc1 {k.lab('kv')}")
        c = f32bits(SCALE * LOG2E)
        for rt in range(2):
            a = ACC + 4 * rt
            k.e(f"v_mul_f32 v{T}, {c:#x}, v{P+2*rt}")
            for r in range(4):
                k.e(f"v_mul_f32 v{a+r}, v{T}, v{a+r}")
            k.e(f"""
            v_cvt_pk_bf16_f32 v{RS+2*rt}, v{a}, v{a+1}
            v_cvt_pk_bf16_f32 v{RS+2*rt+1}, v{a+2}, v{a+3}
            v_add_u32 v{T+1}, {QP}, v{8+rt}
            buffer_store_dwordx2 v[{RS+2*rt}:{RS+2*rt+1}], v{T+1}, s[20:23], 0 offen
            """)
        k.e(f"s_branch {k.lab('fin')}")
        k.label("kv")
        for rt in range(2):
            a = ACC + 4 * rt
            for r in range(4):
                k.e(f"v_mul_f32 v{a+r}, v{P+2*rt}, v{a+r}")
        k.e(f"s_cmp_ge_u32 s24, 38\ns_cbranch_scc1 {k.lab('vpart')}")
        k.e(f"v_mov_b32 v{T+6}, 0")
        for rt in range(2):
            a = ACC + 4 * rt
            k.e(f"""
            v_mul_f32 v{T+5}, v{a}, v{a}
            v_fmac_f32 v{T+5}, v{a+1}, v{a+1}
            v_fmac_f32 v{T+5}, v{a+2}, v{a+2}
            v_fmac_f32 v{T+5}, v{a+3}, v{a+3}
            """)
            row4_sum(k, T + 5, T + 4)
            k.e(f"v_max_f32 v{T+6}, v{T+6}, v{T+5}")
        row16_max(k, T + 6)
        k.e(f"""
        s_sub_u32 s27, s24, 36
        s_lshl_b32 s27, s27, 8
        s_lshl_b32 s28, s12, 2
        s_add_u32 s27, s27, s28
        s_add_u32 s27, s27, {KMAX}
        v_mov_b32 v{T+5}, 0
        s_mov_b64 exec, 1
        buffer_store_dword v{T+6}, v{T+5}, s[20:23], s27 offen
        s_mov_b64 exec, -1
        """)
        k.e(f"s_mul_i32 s28, s12, {TILE_REC}\ns_add_u32 s28, s28, {KVIMG}")
        k.e(f"s_cmp_eq_u32 s24, 37\ns_cbranch_scc1 {k.lab('k1')}")
        k.e(f"""
        v_lshlrev_b32 v{T}, 4, v3
        v_lshrrev_b32 v{T+1}, 1, v4
        v_lshl_add_u32 v{T}, v{T+1}, 9, v{T}
        v_and_b32 v{T+1}, 1, v4
        v_lshl_add_u32 v{T}, v{T+1}, 3, v{T}
        """)
        for rt in range(2):
            a = ACC + 4 * rt
            k.e(f"""
            v_cvt_pk_bf16_f32 v{RS+2*rt}, v{a}, v{a+1}
            v_cvt_pk_bf16_f32 v{RS+2*rt+1}, v{a+2}, v{a+3}
            buffer_store_dwordx2 v[{RS+2*rt}:{RS+2*rt+1}], v{T}, s[20:23], s28 offen offset:{256*rt}
            """)
        k.e(f"s_branch {k.lab('fin')}")
        k.label("k1")
        k.e(f"v_lshlrev_b32 v{T}, 3, v3\ns_mov_b64 exec, 0xffff")
        for rt in range(2):
            a = ACC + 4 * rt
            k.e(f"""
            v_cvt_pk_bf16_f32 v{RS+2*rt}, v{a}, v{a+1}
            v_mov_b32 v{RS+2*rt+1}, 0x3f80
            buffer_store_dwordx2 v[{RS+2*rt}:{RS+2*rt+1}], v{T}, s[20:23], s28 offen offset:{KOFF2 + 128*rt}
            """)
        k.e(f"s_mov_b64 exec, -1\ns_branch {k.lab('fin')}")
        k.label("vpart")
        k.e(f"""
        s_mul_i32 s28, s12, {TILE_REC}
        s_add_u32 s28, s28, {KVIMG + VOFF}
        v_bfe_u32 v{T+1}, v3, 2, 1
        v_mul_u32_u24 v{T}, 304, v{T+1}
        v_and_b32 v{T+1}, 3, v3
        v_lshl_add_u32 v{T}, v{T+1}, 1, v{T}
        v_lshrrev_b32 v{T+1}, 3, v3
        v_lshl_add_u32 v{T}, v{T+1}, 3, v{T}
        s_cmp_eq_u32 s24, 39
        s_cbranch_scc1 {k.lab('v1')}
        v_lshl_add_u32 v{T}, v4, 6, v{T}
        """)
        for rt in range(2):
            a = ACC + 4 * rt
            for r in range(4):
                k.e(f"""
                v_cvt_pk_bf16_f32 v{P+4+r}, v{a+r}, v{a+r}
                buffer_store_short v{P+4+r}, v{T}, s[20:23], s28 offen offset:{608*rt + 16*r}
                """)
        k.e(f"s_branch {k.lab('fin')}")
        k.label("v1")
        k.e(f"v_mov_b32 v{P+6}, 0x3f80\ns_mov_b64 exec, 0xffff")
        for rt in range(2):
            a = ACC + 4 * rt
            k.e(f"""
            v_cvt_pk_bf16_f32 v{P+4}, v{a}, v{a}
            v_cvt_pk_bf16_f32 v{P+5}, v{a+1}, v{a+1}
            buffer_store_short v{P+4}, v{T}, s[20:23], s28 offen offset:{608*rt + 16*16}
            buffer_store_short v{P+5}, v{T}, s[20:23], s28 offen offset:{608*rt + 17*16}
            buffer_store_short v{P+6}, v{T}, s[20:23], s28 offen offset:{608*rt + 18*16}
            """)
        k.e("s_mov_b64 exec, -1")
    k.label("fin")
    k.stamp()
    k.stamp_flush(14)
    k.label("end")
    k.e("s_endpgm")
    return k

def gen_attn(name):
    k = K(name, 512, 256, 163840, 128)
    Q1, Q2 = 8, 12
    KA, VA, SB, PB, OA, M = 16, 32, 48, 80, 96, 112
    AK1, AK2, AV = 113, 114, 115
    FLAG = 159744
    k.e(f"s_cmp_ge_u32 s2, 256\ns_cbranch_scc1 {k.lab('end')}")
    k.e(f"""
    s_load_dwordx2 s[4:5], s[0:1], {ARG['ws']}
    v_lshrrev_b32 v1, 6, v0
    v_and_b32 v2, 63, v0
    s_nop 0
    v_readfirstlane_b32 s14, v1
    v_and_b32 v3, 31, v2
    v_lshrrev_b32 v4, 5, v2
    s_waitcnt lgkmcnt(0)
    """)
    k.stamp()
    k.srd(16, 4, WS_BYTES, 0)
    k.e(f"""
    s_lshl_b32 s15, s2, 3
    s_add_u32 s15, s15, s14
    s_mul_i32 s20, s15, {ROWB}
    s_add_u32 s21, s20, {QP}
    v_mul_u32_u24 v5, 36, v3
    v_lshl_add_u32 v6, v4, 4, v5
    buffer_load_dwordx4 v[{Q1}:{Q1+3}], v6, s[16:19], s21 offen
    buffer_load_dword v{Q2}, v5, s[16:19], s21 offen offset:32
    v_lshlrev_b32 v7, 2, v2
    s_mov_b32 s22, {KMAX}
    buffer_load_dword v118, v7, s[16:19], s22 offen
    buffer_load_dword v119, v7, s[16:19], s22 offen offset:256
    v_lshlrev_b32 v7, 4, v2
    """)
    k.e(f"s_lshl_b32 s22, s14, 10\ns_add_u32 s23, s22, {KVIMG}")
    for i in range(20):
        if i == 19:
            k.e(f"s_cmp_ge_u32 s14, 4\ns_cbranch_scc1 {k.lab('dmadone')}")
        k.e(f"""
        s_mov_b32 m0, s22
        s_add_u32 s22, s22, 8192
        buffer_load_dwordx4 v7, s[16:19], s23 offen lds
        s_add_u32 s23, s23, 8192
        """)
    k.label("dmadone")
    k.e(f"""
    v_lshlrev_b32 v{AK1}, 4, v3
    v_lshl_add_u32 v{AK1}, v4, 9, v{AK1}
    v_lshlrev_b32 v{AK2}, 3, v3
    v_add_u32 v{AK2}, {KOFF2}, v{AK2}
    v_min_u32 v{AV}, 18, v3
    v_lshlrev_b32 v{AV}, 4, v{AV}
    v_mul_u32_u24 v116, 304, v4
    v_add_u32 v{AV}, v{AV}, v116
    v_add_u32 v{AV}, {VOFF}, v{AV}
    v_mov_b32 v{Q2+1}, 0
    v_mov_b32 v{Q2+2}, 0
    v_mov_b32 v{Q2+3}, 0
    v_mov_b32 v{KA+6}, 0
    v_mov_b32 v{KA+7}, 0
    v_mov_b32 v{KA+14}, 0
    v_mov_b32 v{KA+15}, 0
    v_cmp_eq_u32 s[30:31], 0, v4
    s_nop 1
    s_waitcnt vmcnt(19)
    v_cndmask_b32 v{Q2}, 0, v{Q2}, s[30:31]
    """)
    k.e(f"""
    v_dot2_f32_bf16 v116, v{Q1}, v{Q1}, 0
    v_dot2_f32_bf16 v116, v{Q1+1}, v{Q1+1}, v116
    v_dot2_f32_bf16 v116, v{Q1+2}, v{Q1+2}, v116
    v_dot2_f32_bf16 v116, v{Q1+3}, v{Q1+3}, v116
    v_dot2_f32_bf16 v116, v{Q2}, v{Q2}, v116
    """)
    row4_max(k, 118, 117)
    row16_max(k, 118)
    row4_max(k, 119, 117)
    row16_max(k, 119)
    k.e(f"""
    v_add_f32 v118, v118, v119
    v_mov_b32 v117, v116
    s_nop 1
    v_permlane32_swap_b32 v116, v117
    v_add_f32 v116, v116, v117
    v_mul_f32 v116, v116, v118
    v_sqrt_f32 v116, v116
    s_nop 0
    v_mul_f32 v{M}, {f32bits(1.02):#x}, v116
    v_add_f32 v{M}, {f32bits(0.01):#x}, v{M}
    v_cmp_nge_f32 vcc, {f32bits(BOUND_LIMIT):#x}, v{M}
    s_cmp_lg_u64 vcc, 0
    s_cselect_b32 s25, 1, 0
    v_mov_b32 v116, s25
    v_mov_b32 v117, {FLAG}
    v_lshl_add_u32 v117, v1, 2, v117
    ds_write_b32 v117, v116
    s_waitcnt vmcnt(13) lgkmcnt(0)
    s_barrier
    v_mov_b32 v117, {FLAG}
    ds_read_b128 v[{SB}:{SB+3}], v117
    ds_read_b128 v[{SB+4}:{SB+7}], v117 offset:16
    s_waitcnt lgkmcnt(0)
    v_or3_b32 v116, v{SB}, v{SB+1}, v{SB+2}
    v_or3_b32 v116, v116, v{SB+3}, v{SB+4}
    v_or3_b32 v116, v116, v{SB+5}, v{SB+6}
    v_or_b32 v116, v116, v{SB+7}
    s_nop 0
    v_readfirstlane_b32 s26, v116
    """)
    k.stamp()
    def kread(b, off):
        k.e(f"ds_read_b128 v[{KA+8*b}:{KA+8*b+3}], v{AK1} offset:{off}")
        k.e(f"ds_read_b64 v[{KA+8*b+4}:{KA+8*b+5}], v{AK2} offset:{off}")
    def qk(b, s):
        k.e(f"v_mfma_f32_32x32x16_bf16 v[{s}:{s+15}], v[{KA+8*b}:{KA+8*b+3}], v[{Q1}:{Q1+3}], 0")
        k.e(f"v_mfma_f32_32x32x16_bf16 v[{s}:{s+15}], v[{KA+8*b+4}:{KA+8*b+7}], v[{Q2}:{Q2+3}], v[{s}:{s+15}]")
    k.e(f"s_nop 3\ns_cmp_eq_u32 s26, 0\ns_cbranch_scc1 {k.lab('fast')}")
    k.e(f"s_waitcnt vmcnt(0)\ns_barrier\nv_mov_b32 v{M}, 0xff7fffff\ns_mov_b32 s24, 8")
    k.label("p1")
    kread(0, 0)
    for t in range(8):
        b = t & 1
        if t + 1 < 8:
            kread(1 - b, (t + 1) * TILE_REC)
            k.e("s_waitcnt lgkmcnt(2)")
        else:
            k.e("s_waitcnt lgkmcnt(0)")
        qk(b, SB + 16 * b)
        if t == 1:
            k.e("s_nop 7")
        if t > 0:
            sp = SB + 16 * (1 - b)
            for r in range(0, 16, 2):
                k.e(f"v_max3_f32 v{M}, v{M}, v{sp+r}, v{sp+r+1}")
    k.e("s_nop 7\ns_nop 3")
    for r in range(0, 16, 2):
        k.e(f"v_max3_f32 v{M}, v{M}, v{SB+16+r}, v{SB+16+r+1}")
    k.e(f"""
    v_add_u32 v{AK1}, {8*TILE_REC}, v{AK1}
    v_add_u32 v{AK2}, {8*TILE_REC}, v{AK2}
    s_sub_u32 s24, s24, 1
    s_cmp_lg_u32 s24, 0
    s_cbranch_scc1 {k.lab('p1')}
    v_mov_b32 v117, v{M}
    s_nop 1
    v_permlane32_swap_b32 v{M}, v117
    v_max_f32 v{M}, v{M}, v117
    v_subrev_u32 v{AK1}, {64*TILE_REC}, v{AK1}
    v_subrev_u32 v{AK2}, {64*TILE_REC}, v{AK2}
    """)
    k.label("fast")
    k.e(f"""
    v_sub_f32 v{M}, 0, v{M}
    v_cvt_pk_bf16_f32 v117, v{M}, 0
    v_and_b32 v117, 0xffff, v117
    v_cndmask_b32 v{Q2+1}, 0, v117, s[30:31]
    """)
    for r in range(16):
        k.e(f"v_mov_b32 v{OA+r}, 0")
    for r in range(8):
        k.e(f"v_mov_b32 v{PB+8+r}, 0\nv_mov_b32 v{VA+8+r}, 0")
    def vread(b, off):
        k.e(f"ds_read_b128 v[{VA+8*b}:{VA+8*b+3}], v{AV} offset:{off}")
        k.e(f"ds_read_b128 v[{VA+8*b+4}:{VA+8*b+7}], v{AV} offset:{off+608}")
    kread(0, 0)
    k.e("s_waitcnt lgkmcnt(0)")
    qk(0, SB)
    kread(1, TILE_REC)
    k.e("s_mov_b32 s24, 0\ns_nop 7")
    U = 16
    k.label("main")
    k.e(f"s_cmp_lg_u32 s26, 0\ns_cbranch_scc1 {k.lab('nosync')}")
    k.e(f"s_cmp_eq_u32 s24, 0\ns_cbranch_scc1 {k.lab('nosync')}")
    k.e(f"s_cmp_eq_u32 s24, 1\ns_cbranch_scc1 {k.lab('sy1')}")
    k.e(f"s_cmp_eq_u32 s24, 2\ns_cbranch_scc1 {k.lab('sy2')}")
    k.e(f"s_waitcnt vmcnt(0)\ns_branch {k.lab('sy')}")
    k.label("sy1")
    k.e(f"s_waitcnt vmcnt(8)\ns_branch {k.lab('sy')}")
    k.label("sy2")
    k.e("s_waitcnt vmcnt(3)")
    k.label("sy")
    k.e("s_barrier")
    k.label("nosync")
    def pv(b, half):
        p = PB + 8 * b + 4 * half
        v = VA + 8 * b + 4 * half
        k.e(f"v_mfma_f32_32x32x16_bf16 v[{OA}:{OA+15}], v[{v}:{v+3}], v[{p}:{p+3}], v[{OA}:{OA+15}]")
    for t in range(U):
        b = t & 1
        s_ = SB + 16 * b
        sn = SB + 16 * (1 - b)
        p = PB + 8 * b
        kb = KA + 8 * (1 - b)
        def ex(i):
            for r in range(4):
                k.e(f"v_exp_f32 v{s_+4*i+r}, v{s_+4*i+r}")
        def cv(r):
            k.e(f"v_cvt_pk_bf16_f32 v{p+r}, v{s_+2*r}, v{s_+2*r+1}")
        ex(0)
        k.e("s_waitcnt lgkmcnt(0)")
        k.e(f"v_mfma_f32_32x32x16_bf16 v[{sn}:{sn+15}], v[{kb}:{kb+3}], v[{Q1}:{Q1+3}], 0")
        ex(1)
        k.e(f"v_mfma_f32_32x32x16_bf16 v[{sn}:{sn+15}], v[{kb+4}:{kb+7}], v[{Q2}:{Q2+3}], v[{sn}:{sn+15}]")
        cv(0); cv(1)
        vread(b, t * TILE_REC)
        kread(b, (t + 2) * TILE_REC)
        ex(2)
        pv(1 - b, 0)
        cv(2); cv(3)
        ex(3)
        pv(1 - b, 1)
        cv(4); cv(5); cv(6); cv(7)
    k.e(f"""
    v_add_u32 v{AK1}, {U*TILE_REC}, v{AK1}
    v_add_u32 v{AK2}, {U*TILE_REC}, v{AK2}
    v_add_u32 v{AV}, {U*TILE_REC}, v{AV}
    s_add_u32 s24, s24, 1
    s_cmp_lg_u32 s24, 4
    s_cbranch_scc1 {k.lab('main')}
    s_waitcnt lgkmcnt(0)
    """)
    pv(1, 0); pv(1, 1)
    k.e("s_nop 7\ns_nop 7")
    k.stamp()
    k.e(f"""
    v_rcp_f32 v117, v{OA+10}
    s_add_u32 s21, s20, {OBUF}
    v_lshl_add_u32 v6, v4, 3, v5
    """)
    for r in range(10):
        k.e(f"v_mul_f32 v{OA+r}, v{OA+r}, v117")
    for r in range(5):
        k.e(f"v_cvt_pk_bf16_f32 v{PB+r}, v{OA+2*r}, v{OA+2*r+1}")
    k.e(f"""
    buffer_store_dwordx2 v[{PB}:{PB+1}], v6, s[16:19], s21 offen
    buffer_store_dwordx2 v[{PB+2}:{PB+3}], v6, s[16:19], s21 offen offset:16
    s_and_saveexec_b64 s[32:33], s[30:31]
    buffer_store_dword v{PB+4}, v5, s[16:19], s21 offen offset:32
    s_mov_b64 exec, -1
    """)
    k.stamp()
    k.stamp_flush(14)
    k.label("end")
    k.e("s_endpgm")
    return k

def gen_qkvb(name, a_src, st_in):
    LSTB = 90 * 1024
    k = K(name, 512, 256, 90 * 1024 + 1024, 256)
    AF, ACC, BF, CS, T = 16, 56, 96, 240, 248
    PQ = 480
    k.e(f"s_cmp_ge_u32 s2, 256\ns_cbranch_scc1 {k.lab('end')}")
    aoff = ptr_of(k, 4, a_src)
    k.e(f"s_load_dwordx2 s[6:7], s[0:1], {ARG['ws']}")
    k.e(f"""
    s_and_b32 s12, s2, 31
    s_lshr_b32 s13, s2, 5
    v_lshrrev_b32 v1, 6, v0
    v_and_b32 v2, 63, v0
    v_and_b32 v7, 15, v2
    v_readfirstlane_b32 s14, v1
    v_lshrrev_b32 v3, 2, v2
    v_and_b32 v4, 3, v2
    v_lshrrev_b32 v8, 4, v2
    v_lshlrev_b32 v6, 4, v2
    s_lshl_b32 s26, s12, 6
    s_sub_u32 s26, s26, 16
    s_waitcnt lgkmcnt(0)
    """)
    k.stamp()
    k.srd(16, 4, ACT_BYTES, aoff)
    k.srd(20, 6, WS_BYTES, 0)
    P = 56
    k.e(f"""
    s_cmp_ge_u32 s14, 2
    s_cbranch_scc1 {k.lab('nost')}
    v_min_u32 v11, 79, v0
    v_add_u32 v11, s26, v11
    v_max_i32 v11, 0, v11
    v_lshlrev_b32 v11, 5, v11
    v_add_u32 v11, {STATS + st_in*65536}, v11
    buffer_load_dwordx4 v[{P}:{P+3}], v11, s[20:23], 0 offen
    buffer_load_dwordx4 v[{P+4}:{P+7}], v11, s[20:23], 0 offen offset:16
    """)
    k.label("nost")
    k.e(f"""
    v_mul_u32_u24 v5, {ROWB}, v7
    v_lshl_add_u32 v5, v8, 4, v5
    """)
    k.e("s_mov_b32 s40, s14")
    for i in range(12):
        if i == 11:
            k.e(f"s_cmp_ge_u32 s40, 90\ns_cbranch_scc1 {k.lab('dmadone')}")
        k.e(f"""
        s_mul_i32 s41, s40, 57
        s_lshr_b32 s41, s41, 10
        s_mul_i32 s42, s41, 18
        s_sub_u32 s42, s40, s42
        s_lshl_b32 s42, s42, 6
        s_lshl_b32 s43, s41, 4
        s_add_i32 s43, s43, s26
        s_max_i32 s43, s43, 0
        s_mul_i32 s43, s43, {ROWB}
        s_add_u32 s42, s42, s43
        s_lshl_b32 s43, s40, 10
        s_mov_b32 m0, s43
        s_add_u32 s40, s40, 8
        buffer_load_dwordx4 v5, s[16:19], s42 offen lds
        """)
    k.label("dmadone")
    k.e(f"""
    s_barrier
    s_mul_i32 s24, s13, 15
    s_lshl_b32 s25, s14, 1
    s_add_u32 s27, s24, s25
    s_mul_i32 s24, s27, {18*1024}
    s_add_u32 s24, s24, {WQKVF}
    s_add_u32 s25, s24, {18*1024}
    """)
    PF = 4
    def bload(ks):
        for c in range(2):
            so = 24 + c
            r = BF + 72 * c + 4 * ks
            if ks >= 4 and ks % 4 == 0:
                k.e(f"s_add_u32 s{so}, s{so}, 4096")
            k.e(f"buffer_load_dwordx4 v[{r}:{r+3}], v6, s[20:23], s{so} offen offset:{(ks%4)*1024}")
    for ks in range(PF):
        bload(ks)
    k.e(f"""
    s_lshl_b32 s27, s27, 6
    s_add_u32 s27, s27, {CSB}
    v_lshlrev_b32 v12, 4, v8
    buffer_load_dwordx4 v[{CS}:{CS+3}], v12, s[20:23], s27 offen
    buffer_load_dwordx4 v[{CS+4}:{CS+7}], v12, s[20:23], s27 offen offset:64
    s_add_u32 s28, s27, {CSSTR}
    s_add_u32 s29, s27, {2*CSSTR}
    s_waitcnt vmcnt({2*PF + 2})
    s_cmp_ge_u32 s14, 2
    s_cbranch_scc1 {k.lab('nost2')}
    """)
    emit_rowstat(k, P, T)
    k.e(f"""
    v_lshlrev_b32 v11, 3, v0
    v_add_u32 v11, {LSTB}, v11
    ds_write_b64 v11, v[{P}:{P+1}]
    s_waitcnt lgkmcnt(0)
    """)
    k.label("nost2")
    k.e("s_barrier")
    k.stamp()
    for r in range(40):
        k.e(f"v_mov_b32 v{ACC+r}, 0")
    k.e(f"v_add_u32 v15, {54*1024}, v6")
    def aread(ks):
        b = ks & 1
        for rt in range(5):
            r = AF + 20 * b + 4 * rt
            if rt < 3:
                k.e(f"ds_read_b128 v[{r}:{r+3}], v6 offset:{(rt*18+ks)*1024}")
            else:
                k.e(f"ds_read_b128 v[{r}:{r+3}], v15 offset:{((rt-3)*18+ks)*1024}")
    aread(0)
    for ks in range(18):
        if ks + 1 < 18:
            aread(ks + 1)
        if ks + PF < 18:
            bload(ks + PF)
        k.e(f"s_waitcnt vmcnt({2*(min(ks + PF, 17) - ks) + (2 if ks < PF else 0)}) lgkmcnt({5 if ks + 1 < 18 else 0})")
        b = ks & 1
        for rt in range(5):
            for ct in range(2):
                a = ACC + 8 * rt + 4 * ct
                w = BF + 72 * ct + 4 * ks
                x = AF + 20 * b + 4 * rt
                k.e(f"v_mfma_f32_16x16x32_bf16 v[{a}:{a+3}], v[{w}:{w+3}], v[{x}:{x+3}], v[{a}:{a+3}]")
    k.e(f"""
    buffer_load_dwordx4 v[{BF}:{BF+3}], v12, s[20:23], s28 offen
    buffer_load_dwordx4 v[{BF+4}:{BF+7}], v12, s[20:23], s28 offen offset:64
    buffer_load_dwordx4 v[{BF+8}:{BF+11}], v12, s[20:23], s29 offen
    buffer_load_dwordx4 v[{BF+12}:{BF+15}], v12, s[20:23], s29 offen offset:64
    """)
    k.e(f"v_lshlrev_b32 v11, 3, v7\nv_add_u32 v11, {LSTB}, v11")
    for rt in range(5):
        k.e(f"ds_read_b64 v[{16+2*rt}:{17+2*rt}], v11 offset:{128*rt}")
    k.e("s_waitcnt vmcnt(0) lgkmcnt(0)\ns_nop 3\ns_barrier")
    k.stamp()
    for r in range(8):
        k.e(f"v_add_f32 v{CS+r}, v{CS+r}, v{BF+r}\nv_add_f32 v{CS+r}, v{CS+r}, v{BF+8+r}")
    k.e(f"""
    v_mul_u32_u24 v9, {PQ}, v7
    v_lshl_add_u32 v9, v8, 3, v9
    s_lshl_b32 s24, s14, 6
    v_add_u32 v9, s24, v9
    """)
    for rt in range(5):
        for ct in range(2):
            a = ACC + 8 * rt + 4 * ct
            if ct == 1:
                k.e(f"s_cmp_eq_u32 s14, 7\ns_cbranch_scc1 {k.lab(f'skipw{rt}')}")
            for r in range(4):
                k.e(f"v_fma_f32 v{a+r}, -v{17+2*rt}, v{CS+4*ct+r}, v{a+r}\nv_mul_f32 v{a+r}, v{16+2*rt}, v{a+r}")
            k.e(f"""
            v_cvt_pk_bf16_f32 v{T}, v{a}, v{a+1}
            v_cvt_pk_bf16_f32 v{T+1}, v{a+2}, v{a+3}
            ds_write_b64 v9, v[{T}:{T+1}] offset:{rt*16*PQ + ct*32}
            """)
            if ct == 1:
                k.label(f"skipw{rt}")
    k.e(f"""
    s_waitcnt lgkmcnt(0)
    s_barrier
    s_cmp_ge_u32 s14, 4
    s_cbranch_scc1 {k.lab('end')}
    """)
    k.stamp()
    QR, LG, KR, VR = 16, 32, 96, 176
    k.e(f"""
    s_lshl_b32 s24, s14, 4
    v_add_u32 v9, s24, v3
    v_add_u32 v10, 2, v9
    v_mul_u32_u24 v10, {PQ}, v10
    v_mul_u32_u24 v11, 40, v4
    v_add_u32 v10, v10, v11
    s_lshl_b32 s24, s12, 6
    v_add_u32 v9, s24, v9
    """)
    for i in range(5):
        k.e(f"ds_read_b64 v[{QR+2*i}:{QR+2*i+1}], v10 offset:{14*PQ + 8*i}")
    for w in range(8):
        for i in range(5):
            k.e(f"ds_read_b64 v[{KR+10*w+2*i}:{KR+10*w+2*i+1}], v10 offset:{(14-2*w)*PQ + 160 + 8*i}")
        if w % 2 == 1:
            k.e("s_waitcnt lgkmcnt(0)")
    for w in range(8):
        for i in range(5):
            k.e(f"ds_read_b64 v[{VR+10*w+2*i}:{VR+10*w+2*i+1}], v10 offset:{(14-2*w)*PQ + 320 + 8*i}")
        if w % 2 == 1 and w < 7:
            k.e("s_waitcnt lgkmcnt(5)")
    for w in range(8):
        k.e(f"v_mov_b32 v{LG+w}, 0")
    for i in range(9):
        for w in range(8):
            k.e(f"v_dot2_f32_bf16 v{LG+w}, v{QR+i}, v{KR+10*w+i}, v{LG+w}")
    c = f32bits(SCALE * LOG2E)
    k.e(f"s_mov_b32 s37, {c:#x}\nv_mov_b32 v12, 0xf149f2ca\ns_nop 1")
    for w in range(8):
        k.e(f"v_mul_f32 v{LG+w}, s37, v{LG+w}")
        if w > 0:
            k.e(f"v_cmp_le_u32 vcc, {2*w}, v9\ns_nop 1\nv_cndmask_b32 v{LG+w}, v12, v{LG+w}, vcc")
    k.e(f"""
    v_max3_f32 v13, v{LG}, v{LG+1}, v{LG+2}
    v_max3_f32 v13, v13, v{LG+3}, v{LG+4}
    v_max3_f32 v13, v13, v{LG+5}, v{LG+6}
    v_max_f32 v13, v13, v{LG+7}
    """)
    for w in range(8):
        k.e(f"v_sub_f32 v{LG+w}, v{LG+w}, v13")
    for w in range(8):
        k.e(f"v_exp_f32 v{LG+w}, v{LG+w}")
    k.e(f"""
    s_nop 0
    v_add_f32 v14, v{LG}, v{LG+1}
    v_add_f32 v15, v{LG+2}, v{LG+3}
    v_add_f32 v14, v14, v{LG+4}
    v_add_f32 v15, v15, v{LG+5}
    v_add_f32 v14, v14, v{LG+6}
    v_add_f32 v15, v15, v{LG+7}
    v_add_f32 v14, v14, v15
    v_rcp_f32 v14, v14
    s_waitcnt lgkmcnt(0)
    """)
    for w in range(8):
        k.e(f"v_mul_f32 v{LG+w}, v{LG+w}, v14")
    OA = 40
    for i in range(9):
        for w in range(8):
            k.e(f"v_lshlrev_b32 v58, 16, v{VR+10*w+i}\nv_and_b32 v59, 0xffff0000, v{VR+10*w+i}")
            if w == 0:
                k.e(f"v_mul_f32 v{OA+2*i}, v{LG}, v58\nv_mul_f32 v{OA+2*i+1}, v{LG}, v59")
            else:
                k.e(f"v_fmac_f32 v{OA+2*i}, v{LG+w}, v58\nv_fmac_f32 v{OA+2*i+1}, v{LG+w}, v59")
    for i in range(9):
        k.e(f"v_cvt_pk_bf16_f32 v{60+i}, v{OA+2*i}, v{OA+2*i+1}")
    k.e(f"""
    v_mul_u32_u24 v9, {ROWB}, v9
    v_mul_u32_u24 v11, 36, v4
    v_add_u32 v9, v9, v11
    s_mul_i32 s24, s13, 144
    s_add_u32 s24, s24, {OBUF}
    buffer_store_dwordx4 v[60:63], v9, s[20:23], s24 offen
    buffer_store_dwordx4 v[64:67], v9, s[20:23], s24 offen offset:16
    buffer_store_dword v68, v9, s[20:23], s24 offen offset:32
    """)
    k.stamp()
    k.stamp_flush(14)
    k.label("end")
    k.e("s_endpgm")
    return k

def main():
    ks = []; launches = []
    def add(kk):
        ks.append(kk); launches.append(kk)
    add(gen_prep())
    att = gen_attn("attn")
    xs = [('arg', 'A_x'), ('ws', X1), ('ws', X2), ('ws', X3), ('arg', 'out')]
    for L in range(2):
        add(gen_gemm(f"qkva{L}", xs[2*L], WA1F, 10, 'qkv', st_in=2*L))
        if L == 0:
            ks.append(att)
        launches.append(att)
        add(gen_gemm(f"oa{L}", ('ws', OBUF), WOAF, 9, 'res', res_src=xs[2*L], dst=xs[2*L+1], st_out=2*L+1))
        add(gen_qkvb(f"qkvb{L}", xs[2*L+1], 2*L+1))
        add(gen_gemm(f"ob{L}", ('ws', OBUF), WOBF, 9, 'res', res_src=xs[2*L+1], dst=xs[2*L+2], st_out=(2 if L == 0 else None)))
    hdr = open("interleave_layers__grouped_kv_mqa__sliding_local_dilated__prompt.s.ref").read().split("; Override launch")[0]
    out = hdr
    for l in launches:
        out += f"; @launch kernel={l.name}_kernel grid=({l.grid},1,1) block=({l.threads},1,1) lds={l.lds}\n"
    out += '.amdgcn_target "amdgcn-amd-amdhsa--gfx950"\n.text\n'
    for kk in ks:
        out += f".globl {kk.name}_kernel\n.type {kk.name}_kernel,@function\n" + kk.text()
    out += '.section .rodata,"a"\n'
    for kk in ks:
        out += ".p2align 6\n" + kk.desc()
    open(OUT, "w").write(out)
    print("wrote", OUT, len(out), "bytes")

if __name__ == "__main__":
    main()
```

```python
import math, sys, struct

OUT = "interleave_layers__grouped_kv_mqa__sliding_local_dilated__prompt.s"
PROFILE = len(sys.argv) > 1 and sys.argv[1] == "prof"
if PROFILE:
    OUT = "prof.s"

S, D, H, DH = 2048, 576, 32, 18
ROWB = D * 2
ACT_BYTES = S * ROWB

WA1F = 0x000000
WOAF = 0x0C0000
WOBF = 0x180000
WQKVF = 0x240000
CSA = 0x470000
CSB = 0x471000
CSSTR = 0x4000
KMAX = 0x484000
STATS = 0x490000
QP = 0x500000
KVIMG = 0x780000
OBUF = 0x800000
X1 = 0xB00000
X2 = 0xE00000
X3 = 0x1100000
PROF = 0x2000000
WS_BYTES = 268435456

TILE_REC = 2496
KOFF2 = 1024
VOFF = 1280
SCALE = DH ** -0.5
LOG2E = 1.4426950408889634
BOUND_LIMIT = 60.0

def f32bits(x):
    return struct.unpack("<I", struct.pack("<f", x))[0]

ARG = dict(A_x=0, A_wq=8, A_wk=16, A_wv=24, A_wo=32, B_x=40, B_wqkv=48, B_wo=56, out=64, dbg=72, ws=80)
KID = dict(qkva0=0, attn=1, oa0=2, qkvb0=3, ob0=4, qkva1=5, oa1=6, qkvb1=7, ob1=8, prep=9)

class K:
    def __init__(self, name, threads, grid, lds, vgpr, sgpr=102):
        self.name, self.threads, self.grid, self.lds = name, threads, grid, lds
        self.vgpr, self.sgpr = vgpr, sgpr
        self.L = []
        self.nst = 0
    def e(self, s):
        for line in s.strip("\n").split("\n"):
            if line.strip():
                self.L.append("    " + line.strip())
    def label(self, s):
        self.L.append(f"{self.name}_{s}:")
    def lab(self, s):
        return f"{self.name}_{s}"
    def text(self):
        return f".p2align 8\n{self.name}_kernel:\n" + "\n".join(self.L) + "\n"
    def desc(self):
        acc = (self.vgpr + 3) // 4 * 4
        return f""".amdhsa_kernel {self.name}_kernel
  .amdhsa_next_free_vgpr {self.vgpr}
  .amdhsa_next_free_sgpr {self.sgpr}
  .amdhsa_accum_offset {acc}
  .amdhsa_group_segment_fixed_size 0
  .amdhsa_kernarg_size 88
  .amdhsa_user_sgpr_count 2
  .amdhsa_user_sgpr_kernarg_segment_ptr 1
  .amdhsa_system_sgpr_workgroup_id_x 1
.end_amdhsa_kernel
"""
    def vm(self, tag, optional=False):
        if not hasattr(self, "vq"): self.vq = []
        self.vq.append((tag, optional))
    def vm_n(self, tag):
        idx = max(i for i, (t, o) in enumerate(self.vq) if t == tag)
        return min(63, sum(1 for (t, o) in self.vq[idx+1:] if not o))
    def stamp(self):
        if not PROFILE: return
        i = self.nst; self.nst += 1
        self.e(f"s_memtime s[{70+2*i}:{71+2*i}]")
        if i == 0:
            self.e("s_memrealtime s[96:97]")
    def stamp_flush(self, wavesreg):
        if not PROFILE: return
        kid = KID[self.name]
        self.e(f"s_memrealtime s[{70+2*self.nst}:{71+2*self.nst}]")
        self.e(f"s_cmp_lg_u32 s{wavesreg}, 0\ns_cbranch_scc1 {self.lab('nostamp')}")
        self.e(f"s_load_dwordx2 s[60:61], s[0:1], {ARG['ws']}\ns_waitcnt lgkmcnt(0) vmcnt(0)")
        self.e(f"s_add_u32 s60, s60, {PROF + kid*65536}\ns_addc_u32 s61, s61, 0\ns_mov_b32 s62, 65536\ns_mov_b32 s63, 0x00020000")
        self.e(f"s_mov_b64 exec, 1\ns_lshl_b32 s65, s2, 6\nv_mov_b32 v1, s65")
        for i in range(self.nst + 1):
            self.e(f"v_mov_b32 v2, s{70+2*i}\nbuffer_store_dword v2, v1, s[60:63], 0 offen offset:{4*i}")
        self.e(f"v_mov_b32 v2, s96\nbuffer_store_dword v2, v1, s[60:63], 0 offen offset:60")
        self.label("nostamp")
    def srd(self, d, base, nbytes, off=0):
        if off:
            self.e(f"s_add_u32 s{d}, s{base}, {off}\ns_addc_u32 s{d+1}, s{base+1}, 0")
        else:
            self.e(f"s_mov_b32 s{d}, s{base}\ns_mov_b32 s{d+1}, s{base+1}")
        self.e(f"s_mov_b32 s{d+2}, {nbytes}\ns_mov_b32 s{d+3}, 0x00020000")

def ptr_of(k, sreg, src):
    kind, v = src
    if kind == 'arg':
        k.e(f"s_load_dwordx2 s[{sreg}:{sreg+1}], s[0:1], {ARG[v]}")
        return 0
    k.e(f"s_load_dwordx2 s[{sreg}:{sreg+1}], s[0:1], {ARG['ws']}")
    return v

def row4_sum(k, a, t):
    k.e(f"""
    v_mov_b32 v{t}, v{a}
    s_nop 1
    v_permlane16_swap_b32 v{a}, v{t}
    v_add_f32 v{a}, v{a}, v{t}
    v_mov_b32 v{t}, v{a}
    s_nop 1
    v_permlane32_swap_b32 v{a}, v{t}
    v_add_f32 v{a}, v{a}, v{t}
    """)

def row4_max(k, a, t):
    k.e(f"""
    v_mov_b32 v{t}, v{a}
    s_nop 1
    v_permlane16_swap_b32 v{a}, v{t}
    v_max_f32 v{a}, v{a}, v{t}
    v_mov_b32 v{t}, v{a}
    s_nop 1
    v_permlane32_swap_b32 v{a}, v{t}
    v_max_f32 v{a}, v{a}, v{t}
    """)

def row16_max(k, a):
    k.e(f"""
    s_nop 1
    v_max_f32_dpp v{a}, v{a}, v{a} quad_perm:[1,0,3,2] row_mask:0xf bank_mask:0xf
    s_nop 1
    v_max_f32_dpp v{a}, v{a}, v{a} quad_perm:[2,3,0,1] row_mask:0xf bank_mask:0xf
    s_nop 1
    v_max_f32_dpp v{a}, v{a}, v{a} row_half_mirror row_mask:0xf bank_mask:0xf
    s_nop 1
    v_max_f32_dpp v{a}, v{a}, v{a} row_mirror row_mask:0xf bank_mask:0xf
    """)

def gen_prep():
    NW = 824
    k = K("prep", 256, NW // 4, 0, 96)
    k.e(f"s_cmp_ge_u32 s2, {NW//4}\ns_cbranch_scc1 {k.lab('end')}")
    k.e("""
    s_load_dwordx4 s[4:7], s[0:1], 8
    s_load_dwordx4 s[8:11], s[0:1], 24
    s_load_dwordx4 s[12:15], s[0:1], 48
    s_load_dwordx2 s[16:17], s[0:1], 80
    s_load_dwordx2 s[18:19], s[0:1], 0
    v_lshrrev_b32 v1, 6, v0
    v_and_b32 v2, 63, v0
    v_and_b32 v3, 15, v2
    v_readfirstlane_b32 s20, v1
    v_lshrrev_b32 v4, 4, v2
    s_lshl_b32 s21, s2, 2
    s_nop 2
    s_add_u32 s21, s21, s20
    s_waitcnt lgkmcnt(0)
    """)
    k.stamp()
    k.srd(36, 16, WS_BYTES)
    for b in range(696):
        assert (b * 21846) >> 16 == b // 3
    k.e(f"""
    s_sub_u32 s35, s21, 696
    s_cmp_ge_u32 s21, 696
    s_cbranch_scc1 {k.lab('stats')}
    s_mul_i32 s34, s21, 21846
    s_lshr_b32 s34, s34, 16
    s_mul_i32 s35, s34, 3
    s_sub_u32 s35, s21, s35
    s_mov_b32 s21, s34
    """)
    k.e(f"s_cmp_ge_u32 s21, 232\ns_cbranch_scc1 {k.lab('stats')}")
    k.e(f"s_cmp_lt_u32 s21, 36\ns_cbranch_scc1 {k.lab('wq')}")
    k.e(f"s_cmp_lt_u32 s21, 40\ns_cbranch_scc1 {k.lab('wkv')}")
    k.e(f"s_cmp_lt_u32 s21, 76\ns_cbranch_scc1 {k.lab('woa')}")
    k.e(f"s_cmp_lt_u32 s21, 112\ns_cbranch_scc1 {k.lab('wob')}")
    for b in range(120):
        assert (b * 4370) >> 16 == b // 15
    k.e(f"""
    s_sub_u32 s22, s21, 112
    s_mul_i32 s32, s22, 4370
    s_lshr_b32 s32, s32, 16
    s_mul_i32 s23, s32, 15
    s_sub_u32 s33, s22, s23
    s_mul_i32 s30, s22, {18*1024}
    s_add_u32 s30, s30, {WQKVF}
    s_lshl_b32 s31, s22, 6
    s_add_u32 s31, s31, {CSB}
    """)
    k.srd(24, 12, 576 * 1728 * 2)
    k.e("""
    s_mov_b32 s28, 3456
    s_lshl_b32 s23, s33, 4
    v_add_u32 v6, s23, v3
    v_mul_u32_u24 v7, 0x334, v6
    v_lshrrev_b32 v7, 16, v7
    v_mul_u32_u24 v8, 80, v7
    v_sub_u32 v8, v6, v8
    v_mul_u32_u24 v9, 0xccd, v8
    v_lshrrev_b32 v9, 16, v9
    v_mul_u32_u24 v10, 20, v9
    v_sub_u32 v10, v8, v10
    s_mul_i32 s23, s32, 72
    v_mul_u32_u24 v11, 18, v9
    v_add_u32 v11, v11, v10
    v_add_u32 v11, s23, v11
    v_mul_u32_u24 v12, 576, v7
    v_add_u32 v11, v11, v12
    v_lshlrev_b32 v5, 1, v11
    v_mov_b32 v13, 0x7fff0000
    v_cmp_gt_u32 vcc, 18, v10
    s_nop 1
    v_cndmask_b32 v5, v13, v5, vcc
    """)
    for c in range(240):
        assert (c * 0x334) >> 16 == c // 80
    for r in range(80):
        assert (r * 0xccd) >> 16 == r // 20
    k.e(f"s_branch {k.lab('go')}")
    def square(lbl, base, sptr, dst, cs):
        k.label(lbl)
        k.e(f"s_sub_u32 s22, s21, {base}\ns_mul_i32 s30, s22, {18*1024}\ns_add_u32 s30, s30, {dst}")
        if cs is None:
            k.e("s_mov_b32 s31, -1")
        else:
            k.e(f"s_lshl_b32 s31, s22, 6\ns_add_u32 s31, s31, {cs}")
        k.srd(24, sptr, 576 * 576 * 2)
        k.e("s_mov_b32 s28, 1152\ns_lshl_b32 s23, s22, 4\nv_add_u32 v5, s23, v3\nv_lshlrev_b32 v5, 1, v5")
        k.e(f"s_branch {k.lab('go')}")
    square("wq", 0, 4, WA1F, CSA)
    square("woa", 40, 10, WOAF, None)
    square("wob", 76, 14, WOBF, None)
    k.label("wkv")
    k.e(f"""
    s_sub_u32 s22, s21, 36
    s_mul_i32 s30, s21, {18*1024}
    s_add_u32 s30, s30, {WA1F}
    s_lshl_b32 s31, s21, 6
    s_add_u32 s31, s31, {CSA}
    s_cmp_lt_u32 s22, 2
    s_cselect_b32 s24, s6, s8
    s_cselect_b32 s25, s7, s9
    s_mov_b32 s26, {576*18*2}
    s_mov_b32 s27, 0x00020000
    s_mov_b32 s28, 36
    s_and_b32 s23, s22, 1
    s_lshl_b32 s23, s23, 4
    v_add_u32 v6, s23, v3
    v_lshlrev_b32 v5, 1, v6
    v_mov_b32 v13, 0x7fff0000
    v_cmp_gt_u32 vcc, 18, v6
    s_nop 1
    v_cndmask_b32 v5, v13, v5, vcc
    """)
    k.label("go")
    k.e(f"""
    v_lshlrev_b32 v6, 3, v4
    s_mul_i32 s23, s35, 192
    v_add_u32 v6, s23, v6
    v_mul_lo_u32 v6, v6, s28
    v_add_u32 v5, v5, v6
    s_mov_b32 s40, 0
    s_lshl_b32 s29, s28, 5
    v_lshlrev_b32 v7, 4, v2
    s_mul_i32 s23, s35, 6144
    s_add_u32 s30, s30, s23
    v_add_u32 v7, s30, v7
    v_mov_b32 v8, 0
    v_mov_b32 v9, 0x3f803f80
    """)
    for j in range(1, 8):
        k.e(f"s_add_u32 s{40+j}, s{39+j}, s28")
    for ks in range(6):
        for j in range(8):
            k.e(f"buffer_load_ushort v{16 + 8*ks + j}, v5, s[24:27], s{40+j} offen")
        k.e("v_add_u32 v5, s29, v5")
    for ks in range(6):
        k.e(f"s_waitcnt vmcnt({8*(5-ks)})")
        for jj in range(4):
            k.e(f"v_lshl_or_b32 v{64+4*ks+jj}, v{16+8*ks+2*jj+1}, 16, v{16+8*ks+2*jj}")
        for jj in range(4):
            k.e(f"v_dot2_f32_bf16 v8, v{64+4*ks+jj}, v9, v8")
        if ks == 4:
            k.e("v_add_u32 v7, 4096, v7")
        k.e(f"buffer_store_dwordx4 v[{64+4*ks}:{64+4*ks+3}], v7, s[36:39], 0 offen offset:{(ks%4)*1024}")
    k.e(f"s_cmp_eq_u32 s31, -1\ns_cbranch_scc1 {k.lab('fin')}\ns_nop 2")
    row4_sum(k, 8, 10)
    k.e(f"""
    v_lshlrev_b32 v11, 2, v3
    s_mul_i32 s23, s35, {CSSTR}
    s_add_u32 s31, s31, s23
    v_add_u32 v11, s31, v11
    s_mov_b64 exec, 0xffff
    buffer_store_dword v8, v11, s[36:39], 0 offen
    s_mov_b64 exec, -1
    s_branch {k.lab('fin')}
    """)
    k.label("stats")
    k.srd(24, 18, ACT_BYTES)
    k.e(f"""
    s_lshl_b32 s22, s35, 4
    v_lshrrev_b32 v5, 2, v2
    v_add_u32 v5, s22, v5
    v_and_b32 v6, 3, v2
    v_mul_u32_u24 v7, {ROWB}, v5
    v_lshl_add_u32 v7, v6, 4, v7
    """)
    for i in range(18):
        k.e(f"buffer_load_dwordx4 v[{16+4*i}:{16+4*i+3}], v7, s[24:27], 0 offen offset:{64*i}")
    k.e("v_mov_b32 v8, 0\nv_mov_b32 v9, 0\nv_mov_b32 v10, 0x3f803f80\ns_waitcnt vmcnt(0)")
    for i in range(72):
        k.e(f"v_dot2_f32_bf16 v8, v{16+i}, v10, v8\nv_dot2_f32_bf16 v9, v{16+i}, v{16+i}, v9")
    k.e(f"""
    s_nop 3
    v_add_f32_dpp v8, v8, v8 quad_perm:[1,0,3,2] row_mask:0xf bank_mask:0xf
    v_add_f32_dpp v9, v9, v9 quad_perm:[1,0,3,2] row_mask:0xf bank_mask:0xf
    s_nop 1
    v_add_f32_dpp v8, v8, v8 quad_perm:[2,3,0,1] row_mask:0xf bank_mask:0xf
    v_add_f32_dpp v9, v9, v9 quad_perm:[2,3,0,1] row_mask:0xf bank_mask:0xf
    v_cmp_eq_u32 vcc, 0, v6
    v_lshlrev_b32 v11, 5, v5
    v_lshl_add_u32 v11, v6, 3, v11
    v_add_u32 v11, {STATS}, v11
    v_cndmask_b32 v8, 0, v8, vcc
    v_cndmask_b32 v9, 0, v9, vcc
    buffer_store_dwordx2 v[8:9], v11, s[36:39], 0 offen
    """)
    k.label("fin")
    k.stamp()
    k.stamp_flush(20)
    k.label("end")
    k.e("s_endpgm")
    return k

def emit_rowstat(k, p, t):
    k.e(f"""
    v_add_f32 v{p}, v{p}, v{p+2}
    v_add_f32 v{p+1}, v{p+1}, v{p+3}
    v_add_f32 v{p+4}, v{p+4}, v{p+6}
    v_add_f32 v{p+5}, v{p+5}, v{p+7}
    v_add_f32 v{p}, v{p}, v{p+4}
    v_add_f32 v{p+1}, v{p+1}, v{p+5}
    v_mul_f32 v{p}, {f32bits(1.0/576):#x}, v{p}
    v_mul_f32 v{p+1}, {f32bits(1.0/576):#x}, v{p+1}
    v_fma_f32 v{p+1}, -v{p}, v{p}, v{p+1}
    v_max_f32 v{p+1}, 0, v{p+1}
    v_cvt_pk_bf16_f32 v{t}, v{p}, v{p+1}
    v_and_b32 v{p+2}, 0xffff0000, v{t}
    v_lshlrev_b32 v{p+1}, 16, v{t}
    v_add_f32 v{p+2}, {f32bits(1e-5):#x}, v{p+2}
    v_cvt_pk_bf16_f32 v{t}, v{p+2}, v{p+2}
    v_lshlrev_b32 v{p+2}, 16, v{t}
    v_sqrt_f32 v{p+2}, v{p+2}
    s_nop 0
    v_cvt_pk_bf16_f32 v{t}, v{p+2}, v{p+2}
    v_lshlrev_b32 v{p+2}, 16, v{t}
    v_rcp_f32 v{p}, v{p+2}
    s_nop 0
    """)

def emit_dma_a(k, nfrag, nwaves, srd, vbase, srow):
    niter = (nfrag + nwaves - 1) // nwaves
    k.e("s_mov_b32 s40, s14")
    for i in range(niter):
        if (i + 1) * nwaves > nfrag:
            k.e(f"s_cmp_ge_u32 s40, {nfrag}\ns_cbranch_scc1 {k.lab('dmadone')}")
        k.e(f"""
        s_mul_i32 s41, s40, 57
        s_lshr_b32 s41, s41, 10
        s_mul_i32 s42, s41, 18
        s_sub_u32 s42, s40, s42
        s_lshl_b32 s42, s42, 6
        s_mul_i32 s41, s41, {16*ROWB}
        s_add_u32 s42, s42, s41
        s_add_u32 s42, s42, s{srow}
        s_lshl_b32 s43, s40, 10
        s_mov_b32 m0, s43
        s_add_u32 s40, s40, {nwaves}
        buffer_load_dwordx4 v{vbase}, s[{srd}:{srd+3}], s42 offen lds
        """)
    k.label("dmadone")
for f in range(90):
    assert (f * 57) >> 10 == f // 18


def emit_stats_to_lds(k, st_in, nrows_first, row_sgpr, lds_off, P, T):
    pass

LST = 36 * 1024
def gen_gemm(name, a_src, w_off, nct, epi, st_in=None, res_src=None, dst=None, st_out=None):
    k = K(name, 64 * nct, 256, 36 * 1024 + 4096, 160)
    AF, ACC, BF, P, CS, RS, T = 16, 48, 56, 128, 144, 148, 152
    ln = epi != 'res'
    k.e(f"s_cmp_ge_u32 s2, 256\ns_cbranch_scc1 {k.lab('end')}")
    aoff = ptr_of(k, 4, a_src)
    k.e(f"s_load_dwordx2 s[6:7], s[0:1], {ARG['ws']}")
    if epi == 'res':
        roff = ptr_of(k, 8, res_src)
        doff = ptr_of(k, 10, dst)
    k.e(f"""
    s_and_b32 s12, s2, 63
    s_lshr_b32 s13, s2, 6
    v_lshrrev_b32 v1, 6, v0
    v_and_b32 v2, 63, v0
    v_and_b32 v3, 15, v2
    v_readfirstlane_b32 s14, v1
    v_lshrrev_b32 v4, 4, v2
    v_mul_u32_u24 v5, {ROWB}, v3
    v_lshl_add_u32 v5, v4, 4, v5
    v_lshlrev_b32 v6, 4, v2
    s_mul_i32 s15, s12, {32*ROWB}
    s_lshl_b32 s26, s12, 5
    s_waitcnt lgkmcnt(0)
    """)
    k.stamp()
    k.srd(16, 4, ACT_BYTES, aoff)
    k.srd(20, 6, WS_BYTES, 0)
    if ln:
        k.e(f"""
        s_cmp_lg_u32 s14, 0
        s_cbranch_scc1 {k.lab('nost')}
        v_and_b32 v11, 31, v2
        v_add_u32 v11, s26, v11
        v_lshlrev_b32 v11, 5, v11
        v_add_u32 v11, {STATS + st_in*65536}, v11
        buffer_load_dwordx4 v[{P}:{P+3}], v11, s[20:23], 0 offen
        buffer_load_dwordx4 v[{P+4}:{P+7}], v11, s[20:23], 0 offen offset:16
        """)
        k.label("nost")
    emit_dma_a(k, 36, nct, 16, 5, 15)
    k.e("s_barrier")
    k.e(f"""
    s_mul_i32 s24, s13, {nct}
    s_add_u32 s24, s24, s14
    s_mul_i32 s25, s24, {18*1024}
    s_add_u32 s25, s25, {w_off}
    """)
    PF = 9
    def bload(ks):
        if ks >= 4 and ks % 4 == 0:
            k.e("s_add_u32 s25, s25, 4096")
        k.e(f"buffer_load_dwordx4 v[{BF+4*ks}:{BF+4*ks+3}], v6, s[20:23], s25 offen offset:{(ks%4)*1024}")
    for ks in range(PF):
        bload(ks)
    k.e(f"""
    v_add_u32 v7, s26, v3
    s_lshl_b32 s27, s24, 4
    v_lshl_add_u32 v10, v4, 2, s27
    v_mul_u32_u24 v8, {ROWB}, v7
    v_lshl_add_u32 v8, v10, 1, v8
    v_add_u32 v9, {16*ROWB}, v8
    """)
    if epi == 'res':
        k.srd(28, 8, ACT_BYTES, roff)
        k.srd(32, 10, ACT_BYTES, doff)
        k.e(f"buffer_load_dwordx2 v[{RS}:{RS+1}], v8, s[28:31], 0 offen\nbuffer_load_dwordx2 v[{RS+2}:{RS+3}], v9, s[28:31], 0 offen")
        nextra = 2
    else:
        k.e(f"v_lshlrev_b32 v12, 2, v10\nv_add_u32 v12, {CSA}, v12\nbuffer_load_dwordx4 v[{CS}:{CS+3}], v12, s[20:23], 0 offen")
        k.e(f"s_mov_b32 s27, {CSSTR}\ns_mov_b32 s28, {2*CSSTR}")
        k.e(f"buffer_load_dwordx4 v[{RS}:{RS+3}], v12, s[20:23], s27 offen\nbuffer_load_dwordx4 v[{P+8}:{P+11}], v12, s[20:23], s28 offen")
        nextra = 3
    k.e(f"s_waitcnt vmcnt({PF + nextra})")
    if ln:
        k.e(f"s_cmp_lg_u32 s14, 0\ns_cbranch_scc1 {k.lab('nost2')}")
        emit_rowstat(k, P, T)
        k.e(f"""
        v_lshlrev_b32 v11, 3, v2
        s_mov_b32 exec_lo, -1\n        s_mov_b32 exec_hi, 0
        ds_write_b64 v11, v[{P}:{P+1}] offset:{LST}
        s_mov_b64 exec, -1
        s_waitcnt lgkmcnt(0)
        """)
        k.label("nost2")
    k.e("s_barrier")
    k.stamp()
    for r in range(8):
        k.e(f"v_mov_b32 v{ACC+r}, 0")
    def aread(ks):
        b = ks & 3
        for rt in range(2):
            r = AF + 8 * b + 4 * rt
            k.e(f"ds_read_b128 v[{r}:{r+3}], v6 offset:{(rt*18+ks)*1024}")
    if ln:
        k.e(f"v_lshlrev_b32 v11, 3, v3\nds_read_b64 v[{P}:{P+1}], v11 offset:{LST}\nds_read_b64 v[{P+2}:{P+3}], v11 offset:{LST+128}")
    for ks in range(3):
        aread(ks)
    for ks in range(18):
        if ks + 3 < 18:
            aread(ks + 3)
        if ks + PF < 18:
            bload(ks + PF)
        lg = 2 * min(3, 17 - ks)
        k.e(f"s_waitcnt vmcnt({min(ks + PF, 17) - ks + (nextra if ks < PF else 0)}) lgkmcnt({lg})")
        b = ks & 3
        for rt in range(2):
            a = ACC + 4 * rt
            x = AF + 8 * b + 4 * rt
            k.e(f"v_mfma_f32_16x16x32_bf16 v[{a}:{a+3}], v[{BF+4*ks}:{BF+4*ks+3}], v[{x}:{x+3}], v[{a}:{a+3}]")
    k.e("s_waitcnt vmcnt(0)\ns_nop 7")
    k.stamp()
    if epi == 'res':
        k.e(f"v_mov_b32 v{T+7}, 0x3f803f80")
        for rt in range(2):
            a = ACC + 4 * rt
            r = RS + 2 * rt
            k.e(f"""
            v_cvt_pk_bf16_f32 v{T}, v{a}, v{a+1}
            v_cvt_pk_bf16_f32 v{T+1}, v{a+2}, v{a+3}
            v_lshlrev_b32 v{T+2}, 16, v{T}
            v_and_b32 v{T+3}, 0xffff0000, v{T}
            v_lshlrev_b32 v{T+4}, 16, v{T+1}
            v_and_b32 v{T+5}, 0xffff0000, v{T+1}
            v_lshlrev_b32 v{T+6}, 16, v{r}
            v_and_b32 v{T}, 0xffff0000, v{r}
            v_add_f32 v{T+2}, v{T+2}, v{T+6}
            v_add_f32 v{T+3}, v{T+3}, v{T}
            v_lshlrev_b32 v{T+6}, 16, v{r+1}
            v_and_b32 v{T}, 0xffff0000, v{r+1}
            v_add_f32 v{T+4}, v{T+4}, v{T+6}
            v_add_f32 v{T+5}, v{T+5}, v{T}
            v_cvt_pk_bf16_f32 v{r}, v{T+2}, v{T+3}
            v_cvt_pk_bf16_f32 v{r+1}, v{T+4}, v{T+5}
            buffer_store_dwordx2 v[{r}:{r+1}], v{8+rt}, s[32:35], 0 offen
            """)
            if st_out is not None:
                k.e(f"""
                v_dot2_f32_bf16 v{P+2*rt}, v{r}, v{T+7}, 0
                v_dot2_f32_bf16 v{P+2*rt+1}, v{r}, v{r}, 0
                v_dot2_f32_bf16 v{P+2*rt}, v{r+1}, v{T+7}, v{P+2*rt}
                v_dot2_f32_bf16 v{P+2*rt+1}, v{r+1}, v{r+1}, v{P+2*rt+1}
                """)
        if st_out is not None:
            k.e("s_nop 2")
            for i in range(4):
                row4_sum(k, P + i, T)
            k.e(f"""
            s_lshl_b32 s27, s14, 8
            v_lshl_add_u32 v11, v3, 3, s27
            s_mov_b64 exec, 0xffff
            ds_write_b64 v11, v[{P}:{P+1}] offset:{LST}
            ds_write_b64 v11, v[{P+2}:{P+3}] offset:{LST+128}
            s_mov_b64 exec, -1
            s_waitcnt lgkmcnt(0)
            s_barrier
            s_cmp_lg_u32 s14, 0
            s_cbranch_scc1 {k.lab('fin')}
            v_lshlrev_b32 v11, 3, v2
            """)
            for w in range(nct):
                k.e(f"ds_read_b64 v[{BF+2*w}:{BF+2*w+1}], v11 offset:{LST + 256*w}")
            k.e("s_waitcnt lgkmcnt(0)")
            for w in range(1, nct):
                k.e(f"v_add_f32 v{BF}, v{BF}, v{BF+2*w}\nv_add_f32 v{BF+1}, v{BF+1}, v{BF+2*w+1}")
            k.e(f"""
            v_add_u32 v11, s26, v2
            v_lshlrev_b32 v11, 5, v11
            s_lshl_b32 s27, s13, 3
            s_add_u32 s27, s27, {STATS + st_out*65536}
            s_mov_b32 exec_lo, -1\n        s_mov_b32 exec_hi, 0
            buffer_store_dwordx2 v[{BF}:{BF+1}], v11, s[20:23], s27 offen
            s_mov_b64 exec, -1
            """)
    else:
        for r in range(4):
            k.e(f"v_add_f32 v{CS+r}, v{CS+r}, v{RS+r}\nv_add_f32 v{CS+r}, v{CS+r}, v{P+8+r}")
        for rt in range(2):
            a = ACC + 4 * rt
            for r in range(4):
                k.e(f"v_fma_f32 v{a+r}, -v{P+2*rt+1}, v{CS+r}, v{a+r}")
        k.e(f"s_cmp_ge_u32 s24, 36\ns_cbranch_scc1 {k.lab('kv')}")
        c = f32bits(SCALE * LOG2E)
        for rt in range(2):
            a = ACC + 4 * rt
            k.e(f"v_mul_f32 v{T}, {c:#x}, v{P+2*rt}")
            for r in range(4):
                k.e(f"v_mul_f32 v{a+r}, v{T}, v{a+r}")
            k.e(f"""
            v_cvt_pk_bf16_f32 v{RS+2*rt}, v{a}, v{a+1}
            v_cvt_pk_bf16_f32 v{RS+2*rt+1}, v{a+2}, v{a+3}
            v_add_u32 v{T+1}, {QP}, v{8+rt}
            buffer_store_dwordx2 v[{RS+2*rt}:{RS+2*rt+1}], v{T+1}, s[20:23], 0 offen
            """)
        k.e(f"s_branch {k.lab('fin')}")
        k.label("kv")
        for rt in range(2):
            a = ACC + 4 * rt
            for r in range(4):
                k.e(f"v_mul_f32 v{a+r}, v{P+2*rt}, v{a+r}")
        k.e(f"s_cmp_ge_u32 s24, 38\ns_cbranch_scc1 {k.lab('vpart')}")
        k.e(f"v_mov_b32 v{T+6}, 0")
        for rt in range(2):
            a = ACC + 4 * rt
            k.e(f"""
            v_mul_f32 v{T+5}, v{a}, v{a}
            v_fmac_f32 v{T+5}, v{a+1}, v{a+1}
            v_fmac_f32 v{T+5}, v{a+2}, v{a+2}
            v_fmac_f32 v{T+5}, v{a+3}, v{a+3}
            """)
            row4_sum(k, T + 5, T + 4)
            k.e(f"v_max_f32 v{T+6}, v{T+6}, v{T+5}")
        row16_max(k, T + 6)
        k.e(f"""
        s_sub_u32 s27, s24, 36
        s_lshl_b32 s27, s27, 8
        s_lshl_b32 s28, s12, 2
        s_add_u32 s27, s27, s28
        s_add_u32 s27, s27, {KMAX}
        v_mov_b32 v{T+5}, 0
        s_mov_b64 exec, 1
        buffer_store_dword v{T+6}, v{T+5}, s[20:23], s27 offen
        s_mov_b64 exec, -1
        """)
        k.e(f"s_mul_i32 s28, s12, {TILE_REC}\ns_add_u32 s28, s28, {KVIMG}")
        k.e(f"s_cmp_eq_u32 s24, 37\ns_cbranch_scc1 {k.lab('k1')}")
        k.e(f"""
        v_lshlrev_b32 v{T}, 4, v3
        v_lshrrev_b32 v{T+1}, 1, v4
        v_lshl_add_u32 v{T}, v{T+1}, 9, v{T}
        v_and_b32 v{T+1}, 1, v4
        v_lshl_add_u32 v{T}, v{T+1}, 3, v{T}
        """)
        for rt in range(2):
            a = ACC + 4 * rt
            k.e(f"""
            v_cvt_pk_bf16_f32 v{RS+2*rt}, v{a}, v{a+1}
            v_cvt_pk_bf16_f32 v{RS+2*rt+1}, v{a+2}, v{a+3}
            buffer_store_dwordx2 v[{RS+2*rt}:{RS+2*rt+1}], v{T}, s[20:23], s28 offen offset:{256*rt}
            """)
        k.e(f"s_branch {k.lab('fin')}")
        k.label("k1")
        k.e(f"v_lshlrev_b32 v{T}, 3, v3\ns_mov_b64 exec, 0xffff")
        for rt in range(2):
            a = ACC + 4 * rt
            k.e(f"""
            v_cvt_pk_bf16_f32 v{RS+2*rt}, v{a}, v{a+1}
            v_mov_b32 v{RS+2*rt+1}, 0x3f80
            buffer_store_dwordx2 v[{RS+2*rt}:{RS+2*rt+1}], v{T}, s[20:23], s28 offen offset:{KOFF2 + 128*rt}
            """)
        k.e(f"s_mov_b64 exec, -1\ns_branch {k.lab('fin')}")
        k.label("vpart")
        k.e(f"""
        s_mul_i32 s28, s12, {TILE_REC}
        s_add_u32 s28, s28, {KVIMG + VOFF}
        v_bfe_u32 v{T+1}, v3, 2, 1
        v_mul_u32_u24 v{T}, 304, v{T+1}
        v_and_b32 v{T+1}, 3, v3
        v_lshl_add_u32 v{T}, v{T+1}, 1, v{T}
        v_lshrrev_b32 v{T+1}, 3, v3
        v_lshl_add_u32 v{T}, v{T+1}, 3, v{T}
        s_cmp_eq_u32 s24, 39
        s_cbranch_scc1 {k.lab('v1')}
        v_lshl_add_u32 v{T}, v4, 6, v{T}
        """)
        for rt in range(2):
            a = ACC + 4 * rt
            for r in range(4):
                k.e(f"""
                v_cvt_pk_bf16_f32 v{P+4+r}, v{a+r}, v{a+r}
                buffer_store_short v{P+4+r}, v{T}, s[20:23], s28 offen offset:{608*rt + 16*r}
                """)
        k.e(f"s_branch {k.lab('fin')}")
        k.label("v1")
        k.e(f"v_mov_b32 v{P+6}, 0x3f80\ns_mov_b64 exec, 0xffff")
        for rt in range(2):
            a = ACC + 4 * rt
            k.e(f"""
            v_cvt_pk_bf16_f32 v{P+4}, v{a}, v{a}
            v_cvt_pk_bf16_f32 v{P+5}, v{a+1}, v{a+1}
            buffer_store_short v{P+4}, v{T}, s[20:23], s28 offen offset:{608*rt + 16*16}
            buffer_store_short v{P+5}, v{T}, s[20:23], s28 offen offset:{608*rt + 17*16}
            buffer_store_short v{P+6}, v{T}, s[20:23], s28 offen offset:{608*rt + 18*16}
            """)
        k.e("s_mov_b64 exec, -1")
    k.label("fin")
    k.stamp()
    k.stamp_flush(14)
    k.label("end")
    k.e("s_endpgm")
    return k

def gen_attn(name):
    k = K(name, 512, 256, 163840, 128)
    Q1, Q2 = 8, 12
    KA, VA, SB, PB, OA, M = 16, 32, 48, 80, 96, 112
    AK1, AK2, AV = 113, 114, 115
    FLAG = 159744
    k.e(f"s_cmp_ge_u32 s2, 256\ns_cbranch_scc1 {k.lab('end')}")
    k.e(f"""
    s_load_dwordx2 s[4:5], s[0:1], {ARG['ws']}
    v_lshrrev_b32 v1, 6, v0
    v_and_b32 v2, 63, v0
    s_nop 0
    v_readfirstlane_b32 s14, v1
    v_and_b32 v3, 31, v2
    v_lshrrev_b32 v4, 5, v2
    s_waitcnt lgkmcnt(0)
    """)
    k.stamp()
    k.srd(16, 4, WS_BYTES, 0)
    k.e(f"""
    s_lshl_b32 s15, s2, 3
    s_add_u32 s15, s15, s14
    s_mul_i32 s20, s15, {ROWB}
    s_add_u32 s21, s20, {QP}
    v_mul_u32_u24 v5, 36, v3
    v_lshl_add_u32 v6, v4, 4, v5
    buffer_load_dwordx4 v[{Q1}:{Q1+3}], v6, s[16:19], s21 offen
    buffer_load_dword v{Q2}, v5, s[16:19], s21 offen offset:32
    v_lshlrev_b32 v7, 2, v2
    s_mov_b32 s22, {KMAX}
    buffer_load_dword v118, v7, s[16:19], s22 offen
    buffer_load_dword v119, v7, s[16:19], s22 offen offset:256
    v_lshlrev_b32 v7, 4, v2
    """)
    k.e(f"s_lshl_b32 s22, s14, 10\ns_add_u32 s23, s22, {KVIMG}")
    def dmac(i, tag=""):
        if i == 19:
            k.e(f"s_cmp_ge_u32 s14, 4\ns_cbranch_scc1 {k.lab('dmadone'+tag)}")
        k.e(f"""
        s_mov_b32 m0, s22
        s_add_u32 s22, s22, 8192
        buffer_load_dwordx4 v7, s[16:19], s23 offen lds
        s_add_u32 s23, s23, 8192
        """)
        if i == 19:
            k.label("dmadone" + tag)
    for i in range(4):
        dmac(i)
    k.e(f"""
    v_lshlrev_b32 v{AK1}, 4, v3
    v_lshl_add_u32 v{AK1}, v4, 9, v{AK1}
    v_lshlrev_b32 v{AK2}, 3, v3
    v_add_u32 v{AK2}, {KOFF2}, v{AK2}
    v_min_u32 v{AV}, 18, v3
    v_lshlrev_b32 v{AV}, 4, v{AV}
    v_mul_u32_u24 v116, 304, v4
    v_add_u32 v{AV}, v{AV}, v116
    v_add_u32 v{AV}, {VOFF}, v{AV}
    v_mov_b32 v{Q2+1}, 0
    v_mov_b32 v{Q2+2}, 0
    v_mov_b32 v{Q2+3}, 0
    v_mov_b32 v{KA+6}, 0
    v_mov_b32 v{KA+7}, 0
    v_mov_b32 v{KA+14}, 0
    v_mov_b32 v{KA+15}, 0
    v_cmp_eq_u32 s[30:31], 0, v4
    s_nop 1
    s_waitcnt vmcnt(4)
    v_cndmask_b32 v{Q2}, 0, v{Q2}, s[30:31]
    """)
    k.e(f"""
    v_dot2_f32_bf16 v116, v{Q1}, v{Q1}, 0
    v_dot2_f32_bf16 v116, v{Q1+1}, v{Q1+1}, v116
    v_dot2_f32_bf16 v116, v{Q1+2}, v{Q1+2}, v116
    v_dot2_f32_bf16 v116, v{Q1+3}, v{Q1+3}, v116
    v_dot2_f32_bf16 v116, v{Q2}, v{Q2}, v116
    """)
    row4_max(k, 118, 117)
    row16_max(k, 118)
    row4_max(k, 119, 117)
    row16_max(k, 119)
    k.e(f"""
    v_add_f32 v118, v118, v119
    v_mov_b32 v117, v116
    s_nop 1
    v_permlane32_swap_b32 v116, v117
    v_add_f32 v116, v116, v117
    v_mul_f32 v116, v116, v118
    v_sqrt_f32 v116, v116
    s_nop 0
    v_mul_f32 v{M}, {f32bits(1.02):#x}, v116
    v_add_f32 v{M}, {f32bits(0.01):#x}, v{M}
    v_cmp_nge_f32 vcc, {f32bits(BOUND_LIMIT):#x}, v{M}
    s_cmp_lg_u64 vcc, 0
    s_cselect_b32 s25, 1, 0
    v_mov_b32 v116, s25
    v_mov_b32 v117, {FLAG}
    v_lshl_add_u32 v117, v1, 2, v117
    ds_write_b32 v117, v116
    s_waitcnt vmcnt(2) lgkmcnt(0)
    s_barrier
    v_mov_b32 v117, {FLAG}
    ds_read_b128 v[{SB}:{SB+3}], v117
    ds_read_b128 v[{SB+4}:{SB+7}], v117 offset:16
    s_waitcnt lgkmcnt(0)
    v_or3_b32 v116, v{SB}, v{SB+1}, v{SB+2}
    v_or3_b32 v116, v116, v{SB+3}, v{SB+4}
    v_or3_b32 v116, v116, v{SB+5}, v{SB+6}
    v_or_b32 v116, v116, v{SB+7}
    s_nop 0
    v_readfirstlane_b32 s26, v116
    """)
    k.stamp()
    def kread(b, off):
        k.e(f"ds_read_b128 v[{KA+8*b}:{KA+8*b+3}], v{AK1} offset:{off}")
        k.e(f"ds_read_b64 v[{KA+8*b+4}:{KA+8*b+5}], v{AK2} offset:{off}")
    def qk(b, s):
        k.e(f"v_mfma_f32_32x32x16_bf16 v[{s}:{s+15}], v[{KA+8*b}:{KA+8*b+3}], v[{Q1}:{Q1+3}], 0")
        k.e(f"v_mfma_f32_32x32x16_bf16 v[{s}:{s+15}], v[{KA+8*b+4}:{KA+8*b+7}], v[{Q2}:{Q2+3}], v[{s}:{s+15}]")
    k.e(f"s_nop 3\ns_cmp_eq_u32 s26, 0\ns_cbranch_scc1 {k.lab('fast')}")
    for i in range(4, 20):
        dmac(i, "s")
    k.e(f"s_waitcnt vmcnt(0)\ns_barrier\nv_mov_b32 v{M}, 0xff7fffff\ns_mov_b32 s24, 8")
    k.label("p1")
    kread(0, 0)
    for t in range(8):
        b = t & 1
        if t + 1 < 8:
            kread(1 - b, (t + 1) * TILE_REC)
            k.e("s_waitcnt lgkmcnt(2)")
        else:
            k.e("s_waitcnt lgkmcnt(0)")
        qk(b, SB + 16 * b)
        if t == 1:
            k.e("s_nop 7")
        if t > 0:
            sp = SB + 16 * (1 - b)
            for r in range(0, 16, 2):
                k.e(f"v_max3_f32 v{M}, v{M}, v{sp+r}, v{sp+r+1}")
    k.e("s_nop 7\ns_nop 3")
    for r in range(0, 16, 2):
        k.e(f"v_max3_f32 v{M}, v{M}, v{SB+16+r}, v{SB+16+r+1}")
    k.e(f"""
    v_add_u32 v{AK1}, {8*TILE_REC}, v{AK1}
    v_add_u32 v{AK2}, {8*TILE_REC}, v{AK2}
    s_sub_u32 s24, s24, 1
    s_cmp_lg_u32 s24, 0
    s_cbranch_scc1 {k.lab('p1')}
    v_mov_b32 v117, v{M}
    s_nop 1
    v_permlane32_swap_b32 v{M}, v117
    v_max_f32 v{M}, v{M}, v117
    v_subrev_u32 v{AK1}, {64*TILE_REC}, v{AK1}
    v_subrev_u32 v{AK2}, {64*TILE_REC}, v{AK2}
    """)
    k.label("fast")
    k.e(f"""
    v_sub_f32 v{M}, 0, v{M}
    v_cvt_pk_bf16_f32 v117, v{M}, 0
    v_and_b32 v117, 0xffff, v117
    v_cndmask_b32 v{Q2+1}, 0, v117, s[30:31]
    """)
    for r in range(16):
        k.e(f"v_mov_b32 v{OA+r}, 0")
    for r in range(8):
        k.e(f"v_mov_b32 v{PB+8+r}, 0\nv_mov_b32 v{VA+8+r}, 0")
    def vread(b, off):
        k.e(f"ds_read_b128 v[{VA+8*b}:{VA+8*b+3}], v{AV} offset:{off}")
        k.e(f"ds_read_b128 v[{VA+8*b+4}:{VA+8*b+7}], v{AV} offset:{off+608}")
    kread(0, 0)
    k.e("s_waitcnt lgkmcnt(0)")
    qk(0, SB)
    kread(1, TILE_REC)
    k.e("s_mov_b32 s24, 0\ns_nop 7")
    U = 16
    k.label("main")
    k.e(f"s_cmp_lg_u32 s26, 0\ns_cbranch_scc1 {k.lab('nosync')}")
    k.e(f"s_cmp_lg_u32 s24, 1\ns_cbranch_scc1 {k.lab('nosync')}")
    k.e("s_waitcnt vmcnt(0)\ns_barrier")
    k.label("nosync")
    k.e("s_or_b32 s27, s26, s24")
    def pv(b, half):
        p = PB + 8 * b + 4 * half
        v = VA + 8 * b + 4 * half
        k.e(f"v_mfma_f32_32x32x16_bf16 v[{OA}:{OA+15}], v[{v}:{v+3}], v[{p}:{p+3}], v[{OA}:{OA+15}]")
    for t in range(U):
        b = t & 1
        s_ = SB + 16 * b
        sn = SB + 16 * (1 - b)
        p = PB + 8 * b
        kb = KA + 8 * (1 - b)
        def ex(i):
            for r in range(4):
                k.e(f"v_exp_f32 v{s_+4*i+r}, v{s_+4*i+r}")
        def cv(r):
            k.e(f"v_cvt_pk_bf16_f32 v{p+r}, v{s_+2*r}, v{s_+2*r+1}")
        if t < 8 or t == 11:
            k.e(f"s_cmp_lg_u32 s27, 0\ns_cbranch_scc1 {k.lab(f'ns{t}')}")
            if t in (4, 11):
                k.e(f"s_waitcnt vmcnt({8 if t == 4 else 11})\ns_barrier")
            if t < 8:
                dmac(4 + 2 * t, "f"); dmac(5 + 2 * t, "f")
            k.label(f"ns{t}")
        ex(0)
        k.e("s_waitcnt lgkmcnt(0)")
        k.e(f"v_mfma_f32_32x32x16_bf16 v[{sn}:{sn+15}], v[{kb}:{kb+3}], v[{Q1}:{Q1+3}], 0")
        ex(1)
        k.e(f"v_mfma_f32_32x32x16_bf16 v[{sn}:{sn+15}], v[{kb+4}:{kb+7}], v[{Q2}:{Q2+3}], v[{sn}:{sn+15}]")
        cv(0); cv(1)
        vread(b, t * TILE_REC)
        kread(b, (t + 2) * TILE_REC)
        ex(2)
        pv(1 - b, 0)
        cv(2); cv(3)
        ex(3)
        pv(1 - b, 1)
        cv(4); cv(5); cv(6); cv(7)
    k.e(f"""
    v_add_u32 v{AK1}, {U*TILE_REC}, v{AK1}
    v_add_u32 v{AK2}, {U*TILE_REC}, v{AK2}
    v_add_u32 v{AV}, {U*TILE_REC}, v{AV}
    s_add_u32 s24, s24, 1
    s_cmp_lg_u32 s24, 4
    s_cbranch_scc1 {k.lab('main')}
    s_waitcnt lgkmcnt(0)
    """)
    pv(1, 0); pv(1, 1)
    k.e("s_nop 7\ns_nop 7")
    k.stamp()
    k.e(f"""
    v_rcp_f32 v117, v{OA+10}
    s_add_u32 s21, s20, {OBUF}
    v_lshl_add_u32 v6, v4, 3, v5
    """)
    for r in range(10):
        k.e(f"v_mul_f32 v{OA+r}, v{OA+r}, v117")
    for r in range(5):
        k.e(f"v_cvt_pk_bf16_f32 v{PB+r}, v{OA+2*r}, v{OA+2*r+1}")
    k.e(f"""
    buffer_store_dwordx2 v[{PB}:{PB+1}], v6, s[16:19], s21 offen
    buffer_store_dwordx2 v[{PB+2}:{PB+3}], v6, s[16:19], s21 offen offset:16
    s_and_saveexec_b64 s[32:33], s[30:31]
    buffer_store_dword v{PB+4}, v5, s[16:19], s21 offen offset:32
    s_mov_b64 exec, -1
    """)
    k.stamp()
    k.stamp_flush(14)
    k.label("end")
    k.e("s_endpgm")
    return k

def gen_qkvb(name, a_src, st_in):
    LSTB = 90 * 1024
    k = K(name, 512, 256, 90 * 1024 + 1024, 256)
    AF, ACC, BF, CS, T = 16, 56, 96, 240, 248
    PQ = 480
    k.e(f"s_cmp_ge_u32 s2, 256\ns_cbranch_scc1 {k.lab('end')}")
    aoff = ptr_of(k, 4, a_src)
    k.e(f"s_load_dwordx2 s[6:7], s[0:1], {ARG['ws']}")
    k.e(f"""
    s_and_b32 s12, s2, 31
    s_lshr_b32 s13, s2, 5
    v_lshrrev_b32 v1, 6, v0
    v_and_b32 v2, 63, v0
    v_and_b32 v7, 15, v2
    v_readfirstlane_b32 s14, v1
    v_lshrrev_b32 v3, 2, v2
    v_and_b32 v4, 3, v2
    v_lshrrev_b32 v8, 4, v2
    v_lshlrev_b32 v6, 4, v2
    s_lshl_b32 s26, s12, 6
    s_sub_u32 s26, s26, 16
    s_waitcnt lgkmcnt(0)
    """)
    k.stamp()
    k.srd(16, 4, ACT_BYTES, aoff)
    k.srd(20, 6, WS_BYTES, 0)
    P = 56
    k.e(f"""
    s_cmp_ge_u32 s14, 2
    s_cbranch_scc1 {k.lab('nost')}
    v_min_u32 v11, 79, v0
    v_add_u32 v11, s26, v11
    v_max_i32 v11, 0, v11
    v_lshlrev_b32 v11, 5, v11
    v_add_u32 v11, {STATS + st_in*65536}, v11
    buffer_load_dwordx4 v[{P}:{P+3}], v11, s[20:23], 0 offen
    buffer_load_dwordx4 v[{P+4}:{P+7}], v11, s[20:23], 0 offen offset:16
    """)
    k.label("nost")
    k.e(f"""
    v_mul_u32_u24 v5, {ROWB}, v7
    v_lshl_add_u32 v5, v8, 4, v5
    """)
    k.e("s_mov_b32 s40, s14")
    def dma(i):
        if i == 11:
            k.e(f"s_cmp_ge_u32 s40, 90\ns_cbranch_scc1 {k.lab('dmadone')}")
        k.e(f"""
        s_mul_i32 s41, s40, 205
        s_lshr_b32 s41, s41, 10
        s_mul_i32 s42, s41, 5
        s_sub_u32 s42, s40, s42
        s_lshl_b32 s43, s42, 4
        s_add_i32 s43, s43, s26
        s_max_i32 s43, s43, 0
        s_mul_i32 s43, s43, {ROWB}
        s_lshl_b32 s44, s41, 6
        s_add_u32 s43, s43, s44
        s_mul_i32 s42, s42, 18
        s_add_u32 s42, s42, s41
        s_lshl_b32 s42, s42, 10
        s_mov_b32 m0, s42
        s_add_u32 s40, s40, 8
        buffer_load_dwordx4 v5, s[16:19], s43 offen lds
        """)
        k.vm(f"D{i}", optional=(i == 11))
        if i == 11:
            k.label("dmadone")
    for i in range(4):
        dma(i)
    k.e(f"""
    s_mul_i32 s24, s13, 15
    s_lshl_b32 s25, s14, 1
    s_add_u32 s27, s24, s25
    s_mul_i32 s24, s27, {18*1024}
    s_add_u32 s24, s24, {WQKVF}
    s_add_u32 s25, s24, {18*1024}
    """)
    PF = 4
    def bload(ks):
        for c in range(2):
            so = 24 + c
            r = BF + 72 * c + 4 * ks
            if ks >= 4 and ks % 4 == 0:
                k.e(f"s_add_u32 s{so}, s{so}, 4096")
            k.e(f"buffer_load_dwordx4 v[{r}:{r+3}], v6, s[20:23], s{so} offen offset:{(ks%4)*1024}")
            k.vm(f"B{ks}")
    for ks in range(PF):
        bload(ks)
    for i in range(4, 8):
        dma(i)
    k.e(f"""
    s_lshl_b32 s27, s27, 6
    s_add_u32 s27, s27, {CSB}
    v_lshlrev_b32 v12, 4, v8
    buffer_load_dwordx4 v[{CS}:{CS+3}], v12, s[20:23], s27 offen
    buffer_load_dwordx4 v[{CS+4}:{CS+7}], v12, s[20:23], s27 offen offset:64
    s_add_u32 s28, s27, {CSSTR}
    s_add_u32 s29, s27, {2*CSSTR}
    """)
    k.vm("cs"); k.vm("cs")
    k.e(f"""
    s_waitcnt vmcnt({k.vm_n('D3')})
    s_cmp_ge_u32 s14, 2
    s_cbranch_scc1 {k.lab('nost2')}
    """)
    emit_rowstat(k, P, T)
    k.e(f"""
    v_lshlrev_b32 v11, 3, v0
    v_add_u32 v11, {LSTB}, v11
    ds_write_b64 v11, v[{P}:{P+1}]
    s_waitcnt lgkmcnt(0)
    """)
    k.label("nost2")
    k.e("s_barrier")
    k.stamp()
    for r in range(40):
        k.e(f"v_mov_b32 v{ACC+r}, 0")
    k.e(f"v_add_u32 v15, {54*1024}, v6")
    def aread(ks):
        b = ks & 1
        for rt in range(5):
            r = AF + 20 * b + 4 * rt
            if rt < 3:
                k.e(f"ds_read_b128 v[{r}:{r+3}], v6 offset:{(rt*18+ks)*1024}")
            else:
                k.e(f"ds_read_b128 v[{r}:{r+3}], v15 offset:{((rt-3)*18+ks)*1024}")
    aread(0)
    for ks in range(18):
        if ks + 1 == 6:
            k.e(f"s_waitcnt vmcnt({k.vm_n('D7')})\ns_barrier")
        if ks + 1 == 12:
            k.e(f"s_waitcnt vmcnt({k.vm_n('D10')})\ns_barrier")
        if ks + 1 < 18:
            aread(ks + 1)
        if ks == 1:
            for i in range(8, 12):
                dma(i)
        if ks == 3:
            k.e(f"buffer_load_dwordx4 v[{T}:{T+3}], v12, s[20:23], s28 offen\nbuffer_load_dwordx4 v[{T+4}:{T+7}], v12, s[20:23], s28 offen offset:64")
            k.vm("cs2"); k.vm("cs2")
        if ks == 10:
            k.e(f"s_waitcnt vmcnt({k.vm_n('cs2')})")
            for r in range(8):
                k.e(f"v_add_f32 v{CS+r}, v{CS+r}, v{T+r}")
            k.e(f"buffer_load_dwordx4 v[{T}:{T+3}], v12, s[20:23], s29 offen\nbuffer_load_dwordx4 v[{T+4}:{T+7}], v12, s[20:23], s29 offen offset:64")
            k.vm("cs3"); k.vm("cs3")
        if ks + PF < 18:
            bload(ks + PF)
        k.e(f"s_waitcnt vmcnt({k.vm_n(f'B{ks}')}) lgkmcnt({5 if ks + 1 < 18 else 0})")
        b = ks & 1
        for rt in range(5):
            for ct in range(2):
                a = ACC + 8 * rt + 4 * ct
                w = BF + 72 * ct + 4 * ks
                x = AF + 20 * b + 4 * rt
                k.e(f"v_mfma_f32_16x16x32_bf16 v[{a}:{a+3}], v[{w}:{w+3}], v[{x}:{x+3}], v[{a}:{a+3}]")
    k.e(f"v_lshlrev_b32 v11, 3, v7\nv_add_u32 v11, {LSTB}, v11")
    for rt in range(5):
        k.e(f"ds_read_b64 v[{16+2*rt}:{17+2*rt}], v11 offset:{128*rt}")
    k.e("s_waitcnt vmcnt(0) lgkmcnt(0)\ns_nop 3\ns_barrier")
    k.stamp()
    for r in range(8):
        k.e(f"v_add_f32 v{CS+r}, v{CS+r}, v{T+r}")
    k.e(f"""
    v_mul_u32_u24 v9, {PQ}, v7
    v_lshl_add_u32 v9, v8, 3, v9
    s_lshl_b32 s24, s14, 6
    v_add_u32 v9, s24, v9
    """)
    for rt in range(5):
        for ct in range(2):
            a = ACC + 8 * rt + 4 * ct
            if ct == 1:
                k.e(f"s_cmp_eq_u32 s14, 7\ns_cbranch_scc1 {k.lab(f'skipw{rt}')}")
            for r in range(4):
                k.e(f"v_fma_f32 v{a+r}, -v{17+2*rt}, v{CS+4*ct+r}, v{a+r}\nv_mul_f32 v{a+r}, v{16+2*rt}, v{a+r}")
            k.e(f"""
            v_cvt_pk_bf16_f32 v{T}, v{a}, v{a+1}
            v_cvt_pk_bf16_f32 v{T+1}, v{a+2}, v{a+3}
            ds_write_b64 v9, v[{T}:{T+1}] offset:{rt*16*PQ + ct*32}
            """)
            if ct == 1:
                k.label(f"skipw{rt}")
    k.e("s_waitcnt lgkmcnt(0)\ns_barrier")
    k.stamp()
    QR, LG, KR, VR = 16, 32, 96, 136
    k.e(f"""
    v_and_b32 v3, 1, v2
    v_bfe_u32 v4, v2, 1, 2
    v_lshrrev_b32 v9, 3, v2
    s_lshl_b32 s24, s14, 3
    v_add_u32 v9, s24, v9
    v_mul_u32_u24 v11, 40, v4
    v_add_u32 v10, 16, v9
    v_mul_u32_u24 v10, {PQ}, v10
    v_add_u32 v10, v10, v11
    v_lshlrev_b32 v13, 3, v3
    v_sub_u32 v14, v9, v13
    v_add_u32 v14, 10, v14
    v_mul_u32_u24 v14, {PQ}, v14
    v_add_u32 v14, v14, v11
    s_lshl_b32 s24, s12, 6
    v_add_u32 v9, s24, v9
    v_sub_u32 v13, v9, v13
    """)
    for i in range(5):
        k.e(f"ds_read_b64 v[{QR+2*i}:{QR+2*i+1}], v10 offset:{8*i}")
    for j in range(4):
        for i in range(5):
            k.e(f"ds_read_b64 v[{KR+10*j+2*i}:{KR+10*j+2*i+1}], v14 offset:{(6-2*j)*PQ + 160 + 8*i}")
        if j == 1:
            k.e("s_waitcnt lgkmcnt(5)")
    k.e("s_waitcnt lgkmcnt(5)")
    for j in range(4):
        for i in range(5):
            k.e(f"ds_read_b64 v[{VR+10*j+2*i}:{VR+10*j+2*i+1}], v14 offset:{(6-2*j)*PQ + 320 + 8*i}")
        if j == 1:
            k.e("s_waitcnt lgkmcnt(10)")
    for j in range(4):
        k.e(f"v_mov_b32 v{LG+j}, 0")
    k.e("s_waitcnt lgkmcnt(15)")
    for i in range(9):
        for j in range(4):
            k.e(f"v_dot2_f32_bf16 v{LG+j}, v{QR+i}, v{KR+10*j+i}, v{LG+j}")
    c = f32bits(SCALE * LOG2E)
    k.e(f"s_mov_b32 s37, {c:#x}\nv_mov_b32 v12, 0xf149f2ca\ns_nop 1")
    for j in range(4):
        k.e(f"v_mul_f32 v{LG+j}, s37, v{LG+j}\nv_cmp_le_i32 vcc, {2*j}, v13\ns_nop 1\nv_cndmask_b32 v{LG+j}, v12, v{LG+j}, vcc")
    k.e(f"""
    v_max3_f32 v15, v{LG}, v{LG+1}, v{LG+2}
    v_max_f32 v15, v15, v{LG+3}
    s_nop 1
    v_max_f32_dpp v15, v15, v15 quad_perm:[1,0,3,2] row_mask:0xf bank_mask:0xf
    """)
    for j in range(4):
        k.e(f"v_sub_f32 v{LG+j}, v{LG+j}, v15")
    for j in range(4):
        k.e(f"v_exp_f32 v{LG+j}, v{LG+j}")
    k.e(f"""
    s_nop 0
    v_add_f32 v15, v{LG}, v{LG+1}
    v_add_f32 v26, v{LG+2}, v{LG+3}
    v_add_f32 v15, v15, v26
    s_nop 1
    v_add_f32_dpp v15, v15, v15 quad_perm:[1,0,3,2] row_mask:0xf bank_mask:0xf
    v_rcp_f32 v15, v15
    s_waitcnt lgkmcnt(0)
    """)
    for j in range(4):
        k.e(f"v_mul_f32 v{LG+j}, v{LG+j}, v15")
    OA = 40
    for i in range(9):
        for j in range(4):
            k.e(f"v_lshlrev_b32 v58, 16, v{VR+10*j+i}\nv_and_b32 v59, 0xffff0000, v{VR+10*j+i}")
            if j == 0:
                k.e(f"v_mul_f32 v{OA+2*i}, v{LG}, v58\nv_mul_f32 v{OA+2*i+1}, v{LG}, v59")
            else:
                k.e(f"v_fmac_f32 v{OA+2*i}, v{LG+j}, v58\nv_fmac_f32 v{OA+2*i+1}, v{LG+j}, v59")
    k.e("s_nop 1")
    for r in range(18):
        k.e(f"v_add_f32_dpp v{OA+r}, v{OA+r}, v{OA+r} quad_perm:[1,0,3,2] row_mask:0xf bank_mask:0xf")
    for i in range(9):
        k.e(f"v_cvt_pk_bf16_f32 v{60+i}, v{OA+2*i}, v{OA+2*i+1}")
    k.e(f"""
    v_mul_u32_u24 v9, {ROWB}, v9
    v_mul_u32_u24 v11, 36, v4
    v_add_u32 v9, v9, v11
    s_mul_i32 s24, s13, 144
    s_add_u32 s24, s24, {OBUF}
    v_cmp_eq_u32 vcc, 0, v3
    s_and_saveexec_b64 s[38:39], vcc
    buffer_store_dwordx4 v[60:63], v9, s[20:23], s24 offen
    buffer_store_dwordx4 v[64:67], v9, s[20:23], s24 offen offset:16
    buffer_store_dword v68, v9, s[20:23], s24 offen offset:32
    s_mov_b64 exec, s[38:39]
    """)
    k.stamp()
    k.stamp_flush(14)
    k.label("end")
    k.e("s_endpgm")
    return k

def main():
    ks = []; launches = []
    def add(kk):
        ks.append(kk); launches.append(kk)
    add(gen_prep())
    att = gen_attn("attn")
    xs = [('arg', 'A_x'), ('ws', X1), ('ws', X2), ('ws', X3), ('arg', 'out')]
    for L in range(2):
        add(gen_gemm(f"qkva{L}", xs[2*L], WA1F, 10, 'qkv', st_in=2*L))
        if L == 0:
            ks.append(att)
        launches.append(att)
        add(gen_gemm(f"oa{L}", ('ws', OBUF), WOAF, 9, 'res', res_src=xs[2*L], dst=xs[2*L+1], st_out=2*L+1))
        add(gen_qkvb(f"qkvb{L}", xs[2*L+1], 2*L+1))
        add(gen_gemm(f"ob{L}", ('ws', OBUF), WOBF, 9, 'res', res_src=xs[2*L+1], dst=xs[2*L+2], st_out=(2 if L == 0 else None)))
    hdr = open("interleave_layers__grouped_kv_mqa__sliding_local_dilated__prompt.s.ref").read().split("; Override launch")[0]
    out = hdr
    for l in launches:
        out += f"; @launch kernel={l.name}_kernel grid=({l.grid},1,1) block=({l.threads},1,1) lds={l.lds}\n"
    out += '.amdgcn_target "amdgcn-amd-amdhsa--gfx950"\n.text\n'
    for kk in ks:
        out += f".globl {kk.name}_kernel\n.type {kk.name}_kernel,@function\n" + kk.text()
    out += '.section .rodata,"a"\n'
    for kk in ks:
        out += ".p2align 6\n" + kk.desc()
    open(OUT, "w").write(out)
    print("wrote", OUT, len(out), "bytes")

if __name__ == "__main__":
    main()
```
